```python
import torch

def _softmax(x, axis=-1):
    return torch.softmax(x, dim=axis)

def _gelu(x):
    return torch.nn.functional.gelu(x, approximate='tanh')

def _silu(x):
    return torch.nn.functional.silu(x)

def _sigmoid(x):
    return torch.sigmoid(x)

def _layernorm(x, axis=-1, eps=1e-05):
    m = x.mean(dim=axis, keepdim=True)
    v = x.var(dim=axis, keepdim=True, unbiased=False)
    return (x - m) / torch.sqrt(v + eps)

def _scatter_add(tgt, idx, src, axis=0):
    return tgt.clone().index_add_(axis, idx, src)

def _segment_sum(src, seg, n):
    out = torch.zeros((n,) + src.shape[1:], dtype=src.dtype)
    return out.index_add_(0, seg, src)

def _pad(x, pw):
    flat = tuple((v for pair in reversed(pw) for v in pair))
    return torch.nn.functional.pad(x, flat)
kernel_name = 'adaLN_cond__mha_block_cached__swiglu_ffn__prompt'

def setup_inputs():

    _w = lambda a: (lambda t: t.to(torch.bfloat16) if t.is_floating_point() else t)(torch.as_tensor(a))

    def _A_setup():
        B, Sq, D = (1, 2048, 1024)
        H, Sk, Dh = (32, 2048, 128)
        return {'x': _w((lambda *s: torch.randn(*s, dtype=torch.bfloat16) * 0.05)(B, Sq, D)), 'k_cache': _w((lambda *s: torch.randn(*s, dtype=torch.bfloat16) * 3.2)(B, H, Sk, Dh)), 'v_cache': _w((lambda *s: torch.randn(*s, dtype=torch.bfloat16) * 0.4)(B, H, Sk, Dh)), 'wq': _w((lambda *s: torch.randn(*s, dtype=torch.bfloat16) * 3.2)(D, H * Dh) * D ** (-0.5)), 'wo': _w((lambda *s: torch.randn(*s, dtype=torch.bfloat16) * 0.4)(H * Dh, D) * (H * Dh) ** (-0.5))}
    _A_in = _A_setup()

    def _B_setup():
        B, S, D, F = (1, 2048, 1024, 3584)
        return {'x': _w((lambda *s: torch.randn(*s, dtype=torch.bfloat16) * 0.05)(B, S, D)), 'w_gate': _w((lambda *s: torch.randn(*s, dtype=torch.bfloat16) * 0.05)(D, F)), 'w_up': _w((lambda *s: torch.randn(*s, dtype=torch.bfloat16) * 0.05)(D, F)), 'w_down': _w((lambda *s: torch.randn(*s, dtype=torch.bfloat16) * 0.05)(F, D))}
    _B_in = _B_setup()
    return {'A_x': _A_in['x'], 'A_k_cache': _A_in['k_cache'], 'A_v_cache': _A_in['v_cache'], 'A_wq': _A_in['wq'], 'A_wo': _A_in['wo'], 'B_x': _B_in['x'], 'B_w_gate': _B_in['w_gate'], 'B_w_up': _B_in['w_up'], 'B_w_down': _B_in['w_down'], 'c': _w((lambda *s: torch.randn(*s, dtype=torch.bfloat16) * 0.1)(1, 1024) * 8.0), 'w_mod': _w((lambda *s: torch.randn(*s, dtype=torch.bfloat16) * 0.1)(1024, 6 * 1024) * 1024 ** (-0.5) * 8.0)}

def reference(A_x, A_k_cache, A_v_cache, A_wq, A_wo, B_x, B_w_gate, B_w_up, B_w_down, c, w_mod):

    def _A_ref(x, k_cache, v_cache, wq, wo):
        B, Sq, D = x.shape
        H, Dh = (32, 128)
        q = (lambda x, *d: x.permute(*d))((x @ wq).reshape(B, Sq, H, Dh), 0, 2, 1, 3)
        scores = torch.einsum('bhqd,bhkd->bhqk', q, k_cache) * Dh ** (-0.5)
        p = _softmax(scores, axis=-1)
        o = torch.einsum('bhqk,bhkd->bhqd', p, v_cache)
        return (lambda x, *d: x.permute(*d))(o, 0, 2, 1, 3).reshape(B, Sq, H * Dh) @ wo

    def _B_ref(x, w_gate, w_up, w_down):
        g = _silu(x @ w_gate)
        u = x @ w_up
        return g * u @ w_down
    x = A_x
    mod = (_silu(c) @ w_mod).reshape(c.shape[0], 6, 1, -1)
    sa, ca, ga, sb, cb, gb = (mod[:, 0].clone(), mod[:, 1].clone(), mod[:, 2].clone(), mod[:, 3].clone(), mod[:, 4].clone(), mod[:, 5].clone())
    h = _layernorm(x, axis=-1) * (1 + ca) + sa
    x = x + ga * _A_ref(h, A_k_cache, A_v_cache, A_wq, A_wo)
    h = _layernorm(x, axis=-1) * (1 + cb) + sb
    x = x + gb * _B_ref(h, B_w_gate, B_w_up, B_w_down)
    return x
```

```python
import re

def regs(tok):
    tok = tok.strip()
    neg = tok.lstrip('-')
    if neg.startswith('abs(') or neg.startswith('|'):
        neg = neg.replace('abs(', '').replace(')', '').replace('|', '')
    tok = neg
    m = re.fullmatch(r'([vas])(\d+)', tok)
    if m: return [(m.group(1), int(m.group(2)))]
    m = re.fullmatch(r'([vas])\[(\d+):(\d+)\]', tok)
    if m: return [(m.group(1), i) for i in range(int(m.group(2)), int(m.group(3)) + 1)]
    if tok == 'vcc': return [('s', 'vcc')]
    if tok == 'exec': return [('s', 'exec')]
    if tok == 'm0': return [('s', 'm0')]
    if tok in ('vcc_lo', 'vcc_hi'): return [('s', 'vcc')]
    return []

TRANS = ('v_exp_f32', 'v_log_f32', 'v_rcp_f32', 'v_rsq_f32', 'v_sqrt_f32', 'v_sin_f32', 'v_cos_f32', 'v_rcp_iflag_f32')

class Ins:
    def __init__(self, text):
        self.text = text
        t = text.split(';')[0].strip()
        self.label = None; self.op = None
        self.defs = set(); self.uses = set(); self.kind = 'other'
        if not t: self.kind = 'empty'; return
        if t.endswith(':'):
            self.kind = 'label'; self.label = t[:-1]; return
        if t.startswith('.'):
            self.kind = 'dir'; return
        parts = t.split(None, 1)
        op = parts[0]; self.op = op
        rest = parts[1] if len(parts) > 1 else ''
        ops = [o.strip() for o in re.split(r',(?![^\[]*\])', rest)] if rest else []
        mods = ''
        if ops:
            last = ops[-1].split(None, 1)
            ops[-1] = last[0]
            mods = last[1] if len(last) > 1 else ''
        self.ops = ops; self.mods = mods
        R = [regs(o) for o in ops]
        base = re.sub(r'_(e32|e64|dpp|sdwa)$', '', op)
        self.base = base
        self.dpp = ('row_' in mods or 'quad_perm' in mods or op.endswith('_dpp'))
        if base.startswith('v_mfma'):
            self.kind = 'mfma'
            self.D = R[0]; self.A = R[1]; self.B = R[2]; self.C = R[3]
            self.defs = set(R[0]); self.uses = set(R[1] + R[2] + R[3])
            self.passes = 4 if '16x16x32' in base else 8
        elif base.startswith('v_cmp'):
            self.kind = 'valu'
            self.defs = set(R[0]); self.uses = set(sum(R[1:], []))
            if base.startswith('v_cmpx'): self.defs.add(('s', 'exec'))
        elif base in ('v_readfirstlane_b32', 'v_readlane_b32'):
            self.kind = 'valu'; self.defs = set(R[0]); self.uses = set(sum(R[1:], [])); self.lane_read = True
        elif base.startswith('v_permlane'):
            self.kind = 'valu'; self.defs = set(R[0] + R[1]); self.uses = set(R[0] + R[1]); self.permlane = True
        elif base.startswith('v_add_co') or base.startswith('v_sub_co') or base.startswith('v_addc_co') or base.startswith('v_subb_co'):
            self.kind = 'valu'; self.defs = set(R[0] + R[1]); self.uses = set(sum(R[2:], []))
        elif base.startswith('v_'):
            self.kind = 'valu'; self.defs = set(R[0]); self.uses = set(sum(R[1:], []))
            if base.startswith('v_fmac') or base.startswith('v_mac') or base.startswith('v_dot2c') or base == 'v_writelane_b32' or self.dpp:
                self.uses |= set(R[0])
            if base == 'v_cndmask_b32' and len(ops) == 3: self.uses.add(('s', 'vcc'))
        elif base.startswith('ds_read') or base.startswith('ds_bpermute') or base.startswith('ds_permute') or base.startswith('ds_swizzle'):
            self.kind = 'ds'; self.defs = set(R[0]); self.uses = set(sum(R[1:], []))
        elif base.startswith('ds_'):
            self.kind = 'ds'; self.uses = set(sum(R, []))
        elif base.startswith('buffer_load') or base.startswith('global_load'):
            self.kind = 'vmem'
            if 'lds' in mods.split() or 'lds' in base:
                self.uses = set(sum(R, [])); self.uses.add(('s', 'm0')); self.ldsdma = True
            else:
                self.defs = set(R[0]); self.uses = set(sum(R[1:], []))
        elif base.startswith('buffer_store') or base.startswith('global_store'):
            self.kind = 'vmem'; self.uses = set(sum(R, [])); self.store = True
            if base.startswith('buffer_store'): self.sdata = set(R[0])
            else: self.sdata = set(R[1])
            self.wide = ('x3' in base or 'x4' in base)
        elif base.startswith('buffer_atomic') or base.startswith('global_atomic'):
            self.kind = 'vmem'; self.uses = set(sum(R, []))
            if 'sc0' in mods.split(): self.defs = set(R[0])
        elif base.startswith('buffer_') :
            self.kind = 'vmem'
        elif base == 's_nop':
            self.kind = 'nop'; self.n = int(ops[0], 0) + 1
        elif base.startswith('s_cbranch') or base == 's_branch':
            self.kind = 'branch'; self.target = ops[0]
            if 'vcc' in base: self.uses.add(('s', 'vcc'))
        elif base.startswith('s_cmp') or base.startswith('s_bitcmp'):
            self.kind = 'salu'; self.uses = set(sum(R, []))
        elif base in ('s_waitcnt', 's_barrier', 's_endpgm', 's_setprio', 's_sleep'):
            self.kind = 'ctl'
        elif base.startswith('s_load') or base.startswith('s_memtime') or base.startswith('s_memrealtime'):
            self.kind = 'smem'; self.defs = set(R[0]); self.uses = set(sum(R[1:], []))
        elif base.startswith('s_'):
            self.kind = 'salu'; self.defs = set(R[0]); self.uses = set(sum(R[1:], []))
            if 'saveexec' in base: self.defs.add(('s', 'exec')); self.uses.add(('s', 'exec'))
        else:
            raise ValueError('unknown instruction: ' + text)
    def ws(self):
        if self.kind == 'nop': return self.n
        if self.kind in ('label', 'dir', 'empty'): return 0
        return 1

def vregs(s): return {r for r in s if r[0] in 'va'}
def sregs(s): return {r for r in s if r[0] == 's'}

def need_ws(p, c):
    n = 0
    if p.kind == 'valu':
        vd = vregs(p.defs); sd = sregs(p.defs)
        if vd:
            if c.kind == 'mfma' and vd & c.uses: n = max(n, 2)
            if c.kind == 'valu':
                if getattr(c, 'permlane', False) and vd & c.uses: n = max(n, 2)
                if c.dpp and vd & c.uses: n = max(n, 2)
                if getattr(c, 'lane_read', False) and vd & c.uses: n = max(n, 1)
                if p.base in TRANS and vd & (c.uses | set()) and c.base not in TRANS: n = max(n, 1)
                if p.base in TRANS and vd & c.uses: n = max(n, 1)
        if sd:
            if c.kind == 'valu' and (sd & c.uses):
                n = max(n, 2)
                if getattr(c, 'lane_read', False) or c.base == 'v_writelane_b32': n = max(n, 4)
            if c.kind == 'vmem' and (sd & c.uses): n = max(n, 5)
            if c.kind in ('salu', 'smem') and (sd & c.uses) and ('s', 'exec') not in sd: n = max(n, 1)
            if ('s', 'exec') in sd and c.kind in ('mfma',): n = max(n, 4)
            if ('s', 'exec') in sd and c.kind == 'valu' and (c.dpp): n = max(n, 5)
    if p.kind == 'salu':
        if ('s', 'm0') in p.defs and getattr(c, 'ldsdma', False): n = max(n, 1)
    if p.kind == 'mfma':
        D = set(p.D)
        big = {4: 8, 8: 12}[p.passes]
        if c.kind == 'mfma':
            if D & (set(c.A) | set(c.B)): n = max(n, big)
            if D & set(c.C):
                if c.C != p.D or c.passes != p.passes: n = max(n, {4: 6, 8: 10}[p.passes])
        elif c.kind in ('valu', 'ds', 'vmem'):
            if D & (c.uses | c.defs): n = max(n, big)
        if c.kind == 'valu' and set(p.C) & c.defs: n = max(n, {4: 3, 8: 7}[p.passes])
    if p.kind == 'vmem' and getattr(p, 'store', False) and p.wide:
        if c.kind == 'valu' and p.sdata & c.defs: n = max(n, 2)
        elif c.kind in ('ds', 'vmem', 'mfma') and p.sdata & c.defs: n = max(n, 1)
    return n

WINDOW = 14
def fix_hazards(lines, name='', verbose=True):
    ins = [Ins(l) for l in lines]
    out = []
    nfix = 0
    def required(hist, c):
        dist = 0; need = 0
        for p in reversed(hist):
            r = need_ws(p, c)
            if r > dist: need = max(need, r - dist)
            dist += p.ws()
            if dist >= WINDOW + 8: break
        return need
    hist = []
    for c in ins:
        if c.kind in ('label', 'dir', 'empty'):
            out.append(c); continue
        need = required(hist, c)
        if need > 0:
            nop = Ins(f's_nop {need - 1}')
            out.append(nop); hist.append(nop); nfix += 1
            if verbose: print(f'[haz {name}] inserted s_nop {need-1} before: {c.text.strip()}')
        out.append(c); hist.append(c)
        if c.kind == 'branch' and c.op == 's_branch' or c.op == 's_endpgm': hist = []
        if len(hist) > 64: hist = hist[-64:]
    lab = {c.label: i for i, c in enumerate(out) if c.kind == 'label'}
    for i, c in enumerate(out):
        if c.kind == 'branch' and c.target in lab:
            h = [x for x in out[max(0, i - 40):i + 1] if x.kind not in ('label', 'dir', 'empty')]
            j = lab[c.target]
            cnt = 0
            for t in out[j:j + 60]:
                if t.kind in ('label', 'dir', 'empty'): continue
                need = required(h, t)
                if need > 0:
                    raise RuntimeError(f'[haz {name}] hazard across branch {c.text.strip()} -> {t.text.strip()} needs {need} more')
                h.append(t); cnt += t.ws()
                if cnt > WINDOW + 8 or t.kind == 'branch' and t.op == 's_branch': break
    return [c.text for c in out], nfix

class Counter:
    def __init__(self): self.q = []
    def issue(self, tag, n=1):
        for _ in range(n): self.q.append(tag)
    def count_after(self, tag):
        for i in range(len(self.q) - 1, -1, -1):
            if self.q[i] == tag: return len(self.q) - 1 - i
        return None

class Kern:
    def __init__(self, name):
        self.name = name; self.L = []
    def e(self, s):
        for l in s.split('\n'):
            l = l.strip()
            if l: self.L.append(l)
    def label(self, l): self.L.append(f'{l}:')
    def finish(self, vgpr, agpr, sgpr=96, verbose=True):
        body, nfix = fix_hazards(self.L, self.name, verbose)
        acc = (vgpr + 3) // 4 * 4
        total = acc + agpr if agpr else vgpr
        hdr = f'.text\n.globl {self.name}\n.p2align 8\n.type {self.name},@function\n{self.name}:\n'
        kd = f'''.section .rodata,"a"
.p2align 6
.amdhsa_kernel {self.name}
  .amdhsa_next_free_vgpr {total}
  .amdhsa_next_free_sgpr {sgpr}
  .amdhsa_accum_offset {acc}
  .amdhsa_group_segment_fixed_size 0
  .amdhsa_kernarg_size 112
  .amdhsa_user_sgpr_count 2
  .amdhsa_user_sgpr_kernarg_segment_ptr 1
  .amdhsa_system_sgpr_workgroup_id_x 1
  .amdhsa_float_denorm_mode_32 3
.end_amdhsa_kernel
'''
        return hdr + '\n'.join(body) + '\n' + kd
```

```python
from asmlib import *
A_X, A_K, A_V, A_WQ, A_WO, A_BX, A_WG, A_WU, A_WD, A_C, A_WMOD, A_OUT, A_DBG, A_WS = [8*i for i in range(14)]
WS_MOD = 0x0
WS_H1  = 0x0100000
WS_X1  = 0x0500000
WS_H2  = 0x0900000
WS_O   = 0x1000000
WS_ACT = 0x2000000
WS_FLAG = 0x0080000
SZ_FLAG = 0x20000
FL_WO, FL_DOWN, FL_LN = 0x0, 0x8000, 0x10000
SZ_ACTV = 2048*1024*2
QSCALE = 1.4426950408889634 * 128 ** -0.5

import struct
def f32(x):
    return '0x%08x' % struct.unpack('<I', struct.pack('<f', x))[0]

def srd(k, s, lo, hi, size, off=0):
    if off:
        k.e(f's_add_u32 s{s}, s{lo}, {hex(off)}')
        k.e(f's_addc_u32 s{s+1}, s{hi}, 0')
    else:
        k.e(f's_mov_b32 s{s}, s{lo}')
        k.e(f's_mov_b32 s{s+1}, s{hi}')
    k.e(f's_mov_b32 s{s+2}, {hex(size)}')
    k.e(f's_mov_b32 s{s+3}, 0x20000')

def xor32_sum(k, v, tmp, op='v_add_f32'):
    k.e(f'v_mov_b32 v{tmp}, v{v}')
    k.e(f'v_permlane32_swap_b32 v{v}, v{tmp}')
    k.e(f'{op} v{v}, v{v}, v{tmp}')
def xor16_sum(k, v, tmp, op='v_add_f32'):
    k.e(f'v_mov_b32 v{tmp}, v{v}')
    k.e(f'v_permlane16_swap_b32 v{v}, v{tmp}')
    k.e(f'{op} v{v}, v{v}, v{tmp}')
def xor8_sum(k, v, op='v_add_f32'):
    k.e(f'{op}_dpp v{v}, v{v}, v{v} row_ror:8 row_mask:0xf bank_mask:0xf')

import re as _re
def _parse_wait(l):
    d = {}
    for nm, v in _re.findall(r'(vmcnt|lgkmcnt)\((\d+)\)', l): d[nm] = int(v)
    return d
def merge_bodies(bodies):
    b0 = bodies[0]
    for b in bodies[1:]: assert len(b) == len(b0), (len(b), len(b0))
    out = []
    for lines in zip(*bodies):
        if all(l == lines[0] for l in lines): out.append(lines[0]); continue
        assert all(l.startswith('s_waitcnt') for l in lines), lines
        ds = [_parse_wait(l) for l in lines]
        keys = list(ds[0].keys())
        assert all(list(d.keys()) == keys for d in ds), lines
        out.append('s_waitcnt ' + ' '.join(f'{kk}({min(d[kk] for d in ds)})' for kk in keys))
    return out
def emit_loop(k, label, body, ntrips_sim=2):
    save = k.L; bodies = []
    for t in range(ntrips_sim):
        k.L = []
        body(t)
        bodies.append(k.L)
    k.L = save
    k.label(label)
    k.L += merge_bodies(bodies)
```

```python
from common import *

T_THRESH = 48.0

def kern_attn(opts=None):
    opts = opts or {}
    name = 'attn_kernel'
    k = Kern(name)
    KA = 8; VA = 12; KD = 20; VD = 24; WD = 26; AV = 30
    NEGM = 36
    MX = 52
    FF = 56
    TMP = 60
    S = [64, 128]
    QACC = 64
    aO = 0; aQ = 128; aL = 192; aONE = 208; aFR = 212
    KSLOT = lambda n: (n & 3) * 16384
    VSLOT = lambda n: ((n + 2) & 3) * 16384
    k.e(f's_cmp_ge_u32 s2, 256\ns_cbranch_scc1 L_{name}_end')
    k.e(f's_load_dwordx2 s[4:5], s[0:1], {A_WS}')
    k.e(f's_load_dwordx2 s[6:7], s[0:1], {A_WQ}')
    k.e(f's_load_dwordx2 s[8:9], s[0:1], {A_K}')
    k.e(f's_load_dwordx2 s[10:11], s[0:1], {A_V}')
    k.e('v_lshrrev_b32 v2, 6, v0')
    k.e('v_and_b32 v1, 63, v0')
    k.e('v_readfirstlane_b32 s32, v2')
    k.e('s_and_b32 s37, s2, 7\ns_lshl_b32 s37, s37, 2\ns_lshr_b32 s38, s2, 6\ns_add_u32 s37, s37, s38')
    k.e('s_lshr_b32 s38, s2, 3\ns_and_b32 s38, s38, 7')
    k.e('s_lshl_b32 s35, s32, 12')
    k.e('v_lshrrev_b32 v4, 4, v1')
    k.e('v_and_b32 v5, 15, v1')
    k.e('v_lshlrev_b32 v3, 4, v1')
    k.e('v_xor_b32 v6, v4, v5\nv_lshlrev_b32 v6, 4, v6\nv_lshl_add_u32 v6, v5, 8, v6')
    for s in range(4): k.e(f'v_xor_b32 v{KA+s}, {s*64}, v6')
    k.e('v_bfe_u32 v6, v1, 2, 2')
    k.e('v_lshl_add_u32 v6, v4, 2, v6')
    k.e('v_and_b32 v7, 7, v6')
    k.e('v_lshlrev_b32 v7, 5, v7\nv_lshl_add_u32 v7, v6, 8, v7')
    k.e('v_and_b32 v6, 3, v1\nv_lshl_add_u32 v7, v6, 3, v7')
    k.e('v_add_u32 v7, 0x8000, v7')
    for db in range(8): k.e(f'v_xor_b32 v{VA+db}, {db*32}, v7')
    for n in range(4):
        k.e(f'v_add_u32 v6, {4*n}, v4')
        k.e('v_xor_b32 v7, v5, v6\nv_lshlrev_b32 v7, 4, v7')
        k.e(f'v_lshl_add_u32 v{KD+n}, v4, 8, v7')
    for n in range(2):
        k.e(f'v_add_u32 v6, {4*n}, v4')
        k.e('v_lshrrev_b32 v7, 1, v5\nv_xor_b32 v7, v7, v6\nv_lshlrev_b32 v7, 5, v7')
        k.e('v_and_b32 v6, 1, v5\nv_lshl_add_u32 v7, v6, 4, v7')
        k.e(f'v_lshl_add_u32 v{VD+n}, v4, 8, v7')
    for n in range(4):
        k.e(f'v_lshlrev_b32 v6, 8, v4\nv_sub_u32 v7, v{VD+(n&1)}, v6')
        k.e(f'v_add_u32 v6, {4*n}, v4\nv_lshl_add_u32 v7, v6, 13, v7')
        k.e(f'v_subrev_u32 v{WD+n}, {1024*n}, v7')
    k.e(f'v_mov_b32 v{AV}, v3')
    for i in range(1, 4): k.e(f'v_add_u32 v{AV+i}, {i*32768}, v3')
    k.e('s_lshl_b32 s33, s38, 4\ns_lshl_b32 s39, s32, 2\ns_add_u32 s33, s33, s39\ns_lshl_b32 s33, s33, 15')
    k.e('s_lshl_b32 s34, s32, 17\ns_lshl_b32 s39, s37, 8\ns_add_u32 s34, s34, s39')
    k.e('s_waitcnt lgkmcnt(0)')
    srd(k, 12, 4, 5, SZ_ACTV, WS_H1)
    srd(k, 16, 6, 7, 1024*4096*2)
    k.e('s_lshl_b32 s39, s37, 19\ns_add_u32 s39, s39, s35')
    k.e('s_add_u32 s20, s8, s39\ns_addc_u32 s21, s9, 0')
    k.e('s_sub_u32 s22, 0x80000, s35\ns_mov_b32 s23, 0x20000')
    k.e('s_add_u32 s24, s10, s39\ns_addc_u32 s25, s11, 0')
    k.e('s_mov_b32 s26, s22\ns_mov_b32 s27, 0x20000')
    srd(k, 28, 4, 5, 2048*4096*2, WS_O)
    k.e(f's_mov_b32 s46, {f32(T_THRESH)}')
    k.e('s_mov_b32 s45, 0')
    vm = Counter()
    def emit(lst):
        for txt, tag in lst:
            k.e(txt)
            if tag: vm.issue(tag)
    def dmaK(n, soff):
        out = [(f's_add_u32 m0, s35, {KSLOT(n)}', None)]
        for p in range(4): out.append((f'buffer_load_dwordx4 v{KD+p}, s[20:23], {soff} offen offset:{1024*p} lds', ('K', n)))
        return out
    def dmaV(n, soff):
        out = [(f's_add_u32 m0, s35, {65536 + VSLOT(n)}', None)]
        for p in range(4): out.append((f'buffer_load_dwordx4 v{VD+(p&1)}, s[24:27], {soff} offen offset:{1024*p} lds', ('V', n)))
        return out
    def dmaW(s):
        out = [(f's_add_u32 m0, s35, {32768 + (s & 3)*16384}', None)]
        for p in range(4): out.append((f'buffer_load_dwordx4 v{WD+p}, s[16:19], s34 offen offset:{1024*p} lds', ('W', s)))
        out.append((f's_add_u32 s34, s34, {64*8192}', None))
        return out
    def loadH(kk):
        out = []
        for i in range(4):
            b = aO + 16*(kk % 8) + 4*i
            out.append((f'buffer_load_dwordx4 a[{b}:{b+3}], v{AV+i}, s[12:15], s33 offen', ('H', kk)))
        out.append(('s_add_u32 s33, s33, 1024', None))
        return out
    def rdW(gi):
        kk, db = divmod(gi, 8)
        s = kk // 2
        buf = aFR + 4*(gi % 8)
        base = (s & 3)*16384 + (kk & 1)*8192
        return [f'ds_read_b64_tr_b16 a[{buf+2*t}:{buf+2*t+1}], v{VA+db} offset:{base + t*4096}' for t in range(2)]
    HD = 6
    PDW = 4
    for s in range(2): emit(dmaW(s))
    for kk in range(HD): emit(loadH(kk))
    for i in range(128): k.e(f'v_mov_b32 v{QACC+i}, 0')
    k.e(f's_waitcnt vmcnt({vm.count_after(("W", 0))})')
    k.e('s_barrier')
    for gi in range(PDW):
        for t in rdW(gi): k.e(t)
    lim = {}
    def qgroup(gi, extra=None):
        NG, NK, NS = lim['NG'], lim['NK'], lim['NS']
        kk, db = divmod(gi, 8); s = kk // 2
        pre = []; fill = []
        w = []
        if db == 0: w.append(f'vmcnt({vm.count_after(("H", kk))})')
        if gi % 2 == 0:
            nout = max(0, min(gi + PDW, NG) - (gi + 2))
            w.append(f'lgkmcnt({2*nout})')
        if w: pre.append('s_waitcnt ' + ' '.join(w))
        nxt = gi + PDW
        if nxt < NG:
            if nxt % 16 == 0:
                fill.append((f's_waitcnt vmcnt({vm.count_after(("W", nxt // 16))})', None))
                fill.append(('s_barrier', None))
            fill += [(t, None) for t in rdW(nxt)]
        if db == 1 and kk + HD < NK: fill += loadH(kk + HD)
        if (kk & 1) == 0 and db == 4 and s + 2 < NS: fill += dmaW(s + 2)
        if extra: fill += extra
        for p in pre: k.e(p)
        buf = aFR + 4*(gi % 8)
        per = (len(fill) + 3) // 4; fi = 0
        for qb in range(4):
            acc = QACC + (db*4 + qb)*4
            hb = aO + 16*(kk % 8) + 4*qb
            k.e(f'v_mfma_f32_16x16x32_bf16 v[{acc}:{acc+3}], a[{buf}:{buf+3}], a[{hb}:{hb+3}], v[{acc}:{acc+3}]')
            for _ in range(per):
                if fi < len(fill):
                    k.e(fill[fi][0])
                    if fill[fi][1]: vm.issue(fill[fi][1])
                    fi += 1
        assert fi == len(fill)
    BIG = 10**9
    lim.update(NG=BIG, NK=BIG, NS=BIG)
    k.e('s_mov_b32 s36, 3')
    def qbody(t):
        for gi in range(64*t, 64*t + 64): qgroup(gi)
    emit_loop(k, 'L_attn_qloop', qbody)
    k.e('s_sub_u32 s36, s36, 1\ns_cmp_lg_u32 s36, 0\ns_cbranch_scc1 L_attn_qloop')
    lim.update(NG=192, NK=24, NS=12)
    k.e('s_mov_b32 s44, 0\ns_mov_b32 s47, 16384')
    extras = {128 + 5: dmaK(0, 's44'), 128 + 13: dmaK(1, 's47'), 128 + 21: dmaV(0, 's44'), 128 + 29: dmaV(1, 's47')}
    for gi in range(128, 192): qgroup(gi, extras.get(gi))
    for qb in range(4):
        for s in range(4):
            t = TMP
            a0 = QACC + ((2*s)*4 + qb)*4; b0 = QACC + ((2*s+1)*4 + qb)*4
            t = 192 + 4*((qb*4+s) % 8)
            k.e(f'v_cvt_pk_bf16_f32 v{t}, v{a0}, v{a0+1}')
            k.e(f'v_cvt_pk_bf16_f32 v{t+1}, v{a0+2}, v{a0+3}')
            k.e(f'v_cvt_pk_bf16_f32 v{t+2}, v{b0}, v{b0+1}')
            k.e(f'v_cvt_pk_bf16_f32 v{t+3}, v{b0+2}, v{b0+3}')
            k.e('s_nop 1')
            k.e(f'v_permlane32_swap_b32 v{t}, v{t+2}\nv_permlane32_swap_b32 v{t+1}, v{t+3}')
            k.e('s_nop 1')
            k.e(f'v_permlane16_swap_b32 v{t}, v{t+2}\nv_permlane16_swap_b32 v{t+1}, v{t+3}')
            q = aQ + (qb*4 + s)*4
            for u in range(4): k.e(f'v_accvgpr_write_b32 a{q+u}, v{t+u}')
    for db in range(8): k.e(f'v_add_u32 v{VA+db}, 0x8000, v{VA+db}')
    for i in range(128): k.e(f'v_accvgpr_write_b32 a{aO+i}, 0')
    for i in range(16): k.e(f'v_accvgpr_write_b32 a{aL+i}, 0')
    k.e('v_mov_b32 v2, 0x3f803f80')
    for i in range(4): k.e(f'v_accvgpr_write_b32 a{aONE+i}, v2')
    k.e('s_waitcnt vmcnt(0)')
    k.e('s_barrier')
    vm.q = []
    k.e('s_mov_b32 s47, 32768')
    emit(dmaK(2, 's47'))
    def rdK(n, f):
        kb, s = divmod(f, 4)
        buf = aFR + 4*(f % 8)
        return [f'ds_read_b128 a[{buf}:{buf+3}], v{KA+s} offset:{KSLOT(n) + kb*4096}']
    def rdV(n, f):
        ks2, db = divmod(f, 8)
        buf = aFR + 4*(f % 8)
        return [f'ds_read_b64_tr_b16 a[{buf+2*t}:{buf+2*t+1}], v{VA+db} offset:{VSLOT(n) + (32*ks2 + 16*t)*256}' for t in range(2)]
    def Sreg(n, kb, qb):
        return S[n & 1] + (qb*2 + (kb >> 1))*8 + (kb & 1)*4
    def qk_mfma(n, f, qb, czero=False):
        kb, s = divmod(f, 4)
        d = Sreg(n, kb, qb); buf = aFR + 4*(f % 8); q = aQ + (qb*4 + s)*4
        if s == 0: c = '0' if czero else f'v[{NEGM+4*qb}:{NEGM+4*qb+3}]'
        else: c = f'v[{d}:{d+3}]'
        return f'v_mfma_f32_16x16x32_bf16 v[{d}:{d+3}], a[{buf}:{buf+3}], a[{q}:{q+3}], {c}'
    def pv_mfma(n, f, qb):
        ks2, db = divmod(f, 8)
        o = aO + (db*4 + qb)*4; buf = aFR + 4*(f % 8); p = S[n & 1] + (qb*2 + ks2)*8
        return f'v_mfma_f32_16x16x32_bf16 a[{o}:{o+3}], a[{buf}:{buf+3}], v[{p}:{p+3}], a[{o}:{o+3}]'
    def sum_mfma(n, ks2, qb):
        l = aL + 4*qb; p = S[n & 1] + (qb*2 + ks2)*8
        return f'v_mfma_f32_16x16x32_bf16 a[{l}:{l+3}], a[{aONE}:{aONE+3}], v[{p}:{p+3}], a[{l}:{l+3}]'
    def max_ops(n, qb):
        vals = [Sreg(n, kb, qb) + r for kb in range(4) for r in range(4)]
        m = MX + qb
        ops = [f'v_max3_f32 v{m}, v{vals[0]}, v{vals[1]}, v{vals[2]}']
        for i in range(1, 7): ops.append(f'v_max3_f32 v{m}, v{m}, v{vals[2*i+1]}, v{vals[2*i+2]}')
        ops.append(f'v_max_f32 v{m}, v{m}, v{vals[15]}')
        return ops
    def M1(n):
        per = [max_ops(n, qb)[:5] for qb in range(4)]
        return [(1, per[qb][i]) for i in range(5) for qb in range(4)]
    def M2(n):
        per = [max_ops(n, qb)[5:] for qb in range(4)]
        return [(1, per[qb][i]) for i in range(3) for qb in range(4)]
    def EC(n, ks2, qb):
        b = S[n & 1] + (qb*2 + ks2)*8
        e = lambda r: (2, f'v_exp_f32 v{b+r}, v{b+r}')
        c = lambda u: (1, f'v_cvt_pk_bf16_f32 v{b+u}, v{b+2*u}, v{b+2*u+1}')
        return [e(0), e(1), e(2), c(0), e(3), e(4), c(1), e(5), e(6), c(2), e(7), (0, None), c(3)]
    def ec_list(n, ks2):
        out = []
        pend = None
        for qb in range(4):
            u = EC(n, ks2, qb)
            head = u[:11]; last = u[12]
            if pend is not None:
                out.append(head[0]); out.append(pend); out += head[1:]
            else: out += head
            pend = last
        out.append(pend)
        return out
    rare_sites = []
    def check(n, tag):
        lab = f'L_rare_{tag}'; back = f'L_back_{tag}'
        rare_sites.append((n, lab, back))
        return [(1, f'v_max3_f32 v{TMP}, v{MX}, v{MX+1}, v{MX+2}'),
                (1, f'v_max_f32 v{TMP}, v{TMP}, v{MX+3}'),
                (1, f'v_cmp_lt_f32 vcc, s46, v{TMP}'),
                (1, f's_cbranch_vccnz {lab}\n{back}:')]
    resc_sites = []
    def pend_check(tag):
        lab = f'L_resc_{tag}'; back = f'L_rback_{tag}'
        resc_sites.append((lab, back))
        return [('s_cmp_lg_u32 s45, 0', None), (f's_cbranch_scc1 {lab}\n{back}:', None)]

    def run_phase(groups, flex):
        caps = []
        for g in groups:
            fx = list(g['fixed'])
            per = [[] for _ in range(4)]
            gaps = g.get('order', [0, 1, 2, 3])
            for i, it in enumerate(fx): per[min(3, i * 4 // max(4, len(fx))) if len(fx) > 4 else i % 4].append(it)
            g['per'] = per
            for q in range(4):
                used = sum(0 if t[0].endswith(':') else 1 for t in per[q]) + (len(g['pre']) if q == 3 and False else 0)
                caps.append(max(0, 2 - used - (1 if (q == 3 and g.get('nextpre')) else 0)))
        tot = sum(c for c, _ in flex); C = sum(caps)
        ratio = tot / C if C else 0
        cum = 0; used = 0; fi = 0; gi = 0
        for g in groups:
            for p in g['pre']: k.e(p)
            for q in range(4):
                k.e(g['mf'][q])
                for txt, tag in g['per'][q]:
                    k.e(txt)
                    if tag: vm.issue(tag)
                cum += caps[gi] * ratio; gi += 1
                while fi < len(flex) and used + flex[fi][0] * 0.5 <= cum + 1e-9:
                    if flex[fi][1]: k.e(flex[fi][1])
                    used += flex[fi][0]; fi += 1
        while fi < len(flex):
            if flex[fi][1]: k.e(flex[fi][1])
            fi += 1

    PD = 4
    def seq_reads(j, has_x_next, last):
        pass
    def iteration(j, nt_last=None, tag=''):
        hasX = (nt_last is None or j + 1 <= nt_last)
        hasNextX = (nt_last is None or j + 2 <= nt_last)
        if hasX:
            groups = []
            for f in range(16):
                pre = []; fixed = []
                if f % 2 == 0:
                    n_out = 0
                    for ff in (f + 2, f + 3):
                        n_out += 1 if ff < 16 else 2
                    pre.append(f's_waitcnt lgkmcnt({n_out})')
                nx = f + PD
                if nx < 16: fixed += [(t, None) for t in rdK(j + 1, nx)]
                else: fixed += [(t, None) for t in rdV(j, nx - 16)]
                if f == 1: fixed += pend_check(tag + f'_{j & 3}')
                if f == 2 and (nt_last is None or j + 3 <= nt_last): fixed += dmaK(j + 3, 's44')
                if f == 5 and (nt_last is None or j + 2 <= nt_last): fixed += dmaV(j + 2, 's47')
                if f == 8: fixed += [('s_add_u32 s44, s44, 16384', None)]
                if f == 9: fixed += [('s_add_u32 s47, s47, 16384', None)]
                groups.append(dict(mf=[qk_mfma(j + 1, f, qb) for qb in range(4)], pre=pre, fixed=fixed))
            for i in range(15): groups[i]['nextpre'] = bool(groups[i+1]['pre'])
            run_phase(groups[:12], ec_list(j, 1))
            run_phase(groups[12:], M1(j + 1))
        else:
            for c, t in ec_list(j, 1):
                if t: k.e(t)
            for t_ in pend_check(tag + f'_{j & 3}'): k.e(t_[0])
            for nx in range(PD):
                for t in rdV(j, nx): k.e(t)
        groups = []
        for ks2 in range(2):
            groups.append(dict(mf=[sum_mfma(j, ks2, qb) for qb in range(4)], pre=[], fixed=[]))
            for db in range(8):
                f = ks2*8 + db
                pre = []; fixed = []
                if f % 2 == 0:
                    n_out = 0
                    for ff in (f + 2, f + 3):
                        if ff < 16: n_out += 2
                        elif hasNextX: n_out += 1
                    pre.append(f's_waitcnt lgkmcnt({n_out})')
                nx = f + PD
                if nx < 16: fixed += [(t, None) for t in rdV(j, nx)]
                elif hasNextX:
                    if nx == 16:
                        cnts = [c for c in (vm.count_after(('K', j + 2)), vm.count_after(('V', j + 1))) if c is not None]
                        fixed += [(f's_waitcnt vmcnt({min(cnts)})', None), ('s_barrier', None)]
                    fixed += [(t, None) for t in rdK(j + 2, nx - 16)]
                elif nx == 16 and hasX:
                    cnts = [c for c in (vm.count_after(('V', j + 1)),) if c is not None]
                    fixed += [(f's_waitcnt vmcnt({min(cnts)})', None), ('s_barrier', None)]
                groups.append(dict(mf=[pv_mfma(j, f, qb) for qb in range(4)], pre=pre, fixed=fixed))
        for i in range(17): groups[i]['nextpre'] = bool(groups[i+1]['pre'])
        if hasX:
            run_phase(groups[:3], [(0, None)] + M2(j + 1) + check(j + 1, tag + f'_{j & 3}'))
            run_phase(groups[3:], ec_list(j + 1, 0))
        else:
            run_phase(groups, [])

    k.e(f's_waitcnt vmcnt(4)')
    for f in range(PD):
        for t in rdK(0, f): k.e(t)
    groups = []
    for f in range(16):
        pre = []; fixed = []
        if f % 2 == 0:
            n_out = sum(1 for ff in (f + 2, f + 3) if ff < 16)
            pre.append(f's_waitcnt lgkmcnt({n_out})')
        nx = f + PD
        if nx < 16: fixed += [(t, None) for t in rdK(0, nx)]
        groups.append(dict(mf=[qk_mfma(0, f, qb, czero=True) for qb in range(4)], pre=pre, fixed=fixed))
    run_phase(groups, [])
    for f in range(PD):
        for t in rdK(1, f): k.e(t)
    k.e('s_nop 7')
    for qb in range(4):
        for t in max_ops(0, qb): k.e(t)
    for qb in range(4):
        xor16_sum(k, MX + qb, TMP, 'v_max_f32'); xor32_sum(k, MX + qb, TMP, 'v_max_f32')
    for qb in range(4):
        for r in range(4): k.e(f'v_sub_f32 v{NEGM+4*qb+r}, 0, v{MX+qb}')
        for kb in range(4):
            for r in range(4):
                x = Sreg(0, kb, qb) + r
                k.e(f'v_sub_f32 v{x}, v{x}, v{MX+qb}')
    for c, t in ec_list(0, 0):
        if t: k.e(t)
    k.e('s_mov_b32 s44, 49152\ns_mov_b32 s47, 32768')
    k.e('s_mov_b32 s36, 7')
    def abody(t):
        nr, ns = len(rare_sites), len(resc_sites)
        for j in range(4*t, 4*t + 4): iteration(j, None, 'a')
        if t > 0:
            del rare_sites[nr:]; del resc_sites[ns:]
    emit_loop(k, 'L_attn_loop', abody)
    k.e('s_sub_u32 s36, s36, 1\ns_cmp_lg_u32 s36, 0\ns_cbranch_scc1 L_attn_loop')
    for j in range(8, 12): iteration(j, 11, 'c')
    k.e('s_nop 7')
    for qb in range(4):
        k.e(f'v_accvgpr_read_b32 v{MX+qb}, a{aL+4*qb}')
    k.e('s_nop 0')
    for qb in range(4): k.e(f'v_rcp_f32 v{MX+qb}, v{MX+qb}')
    k.e('s_lshl_b32 s39, s38, 4\ns_lshl_b32 s40, s32, 2\ns_add_u32 s39, s39, s40\ns_lshl_b32 s39, s39, 17\ns_lshl_b32 s40, s37, 12\ns_add_u32 s39, s39, s40')
    cnt = 0
    for qb in range(4):
        for s in range(4):
            t = 64 + 16*(cnt % 4); cnt += 1
            for h in range(2):
                o = aO + ((2*s + h)*4 + qb)*4
                for r in range(4): k.e(f'v_accvgpr_read_b32 v{t+4*h+r}, a{o+r}')
            for i in range(8): k.e(f'v_mul_f32 v{t+i}, v{t+i}, v{MX+qb}')
            for u in range(4): k.e(f'v_cvt_pk_bf16_f32 v{t+8+u}, v{t+2*u}, v{t+2*u+1}')
            k.e(f'buffer_store_dwordx4 v[{t+8}:{t+11}], v3, s[28:31], s39 offen offset:{s*1024}')
        k.e('s_add_u32 s39, s39, 0x20000')
    k.e('s_endpgm')
    for (n, lab, back) in rare_sites:
        k.label(lab)
        for qb in range(4):
            xor16_sum(k, MX + qb, TMP, 'v_max_f32'); xor32_sum(k, MX + qb, TMP, 'v_max_f32')
        for qb in range(4):
            k.e(f'v_max_f32 v{MX+qb}, 0, v{MX+qb}')
            k.e(f'v_sub_f32 v{TMP}, 0, v{MX+qb}')
            k.e(f'v_exp_f32 v{FF+qb}, v{TMP}')
            for r in range(4): k.e(f'v_sub_f32 v{NEGM+4*qb+r}, v{NEGM+4*qb+r}, v{MX+qb}')
            for kb in range(4):
                for r in range(4):
                    x = Sreg(n, kb, qb) + r
                    k.e(f'v_sub_f32 v{x}, v{x}, v{MX+qb}')
        k.e('s_mov_b32 s45, 1')
        k.e('s_nop 1')
        k.e(f's_branch {back}')
    for (lab, back) in resc_sites:
        k.label(lab)
        k.e('s_nop 7\ns_nop 7')
        for qb in range(4):
            regs_ = [aO + (db*4 + qb)*4 + r for db in range(8) for r in range(4)] + [aL + 4*qb + r for r in range(4)]
            for i in range(0, len(regs_), 4):
                for u in range(4): k.e(f'v_accvgpr_read_b32 v{TMP+u}, a{regs_[i+u]}')
                for u in range(4): k.e(f'v_mul_f32 v{TMP+u}, v{TMP+u}, v{FF+qb}')
                for u in range(4): k.e(f'v_accvgpr_write_b32 a{regs_[i+u]}, v{TMP+u}')
        k.e('s_mov_b32 s45, 0')
        k.e('s_nop 1')
        k.e(f's_branch {back}')
    k.label(f'L_{name}_end')
    k.e('s_endpgm')
    return k.finish(vgpr=256, agpr=256, sgpr=56)
```

```python
from common import *

def kern_gateup():
    name = 'gateup_kernel'
    k = Kern(name)
    STG = 28672; REG = 14336
    AV = 8
    WV = 12
    TR = 20
    WF = 24
    ACT = 40
    k.e(f's_cmp_ge_u32 s2, 256\ns_cbranch_scc1 L_{name}_end')
    k.e(f's_load_dwordx2 s[4:5], s[0:1], {A_WS}')
    k.e(f's_load_dwordx2 s[6:7], s[0:1], {A_WG}')
    k.e(f's_load_dwordx2 s[8:9], s[0:1], {A_WU}')
    k.e('v_lshrrev_b32 v2, 6, v0')
    k.e('v_and_b32 v1, 63, v0')
    k.e('v_readfirstlane_b32 s32, v2')
    k.e('s_and_b32 s37, s2, 7\ns_lshr_b32 s38, s2, 3')
    k.e('s_lshl_b32 s40, s37, 2\ns_and_b32 s41, s38, 3\ns_add_u32 s40, s40, s41')
    k.e('s_lshr_b32 s39, s38, 2')
    k.e('v_lshlrev_b32 v3, 4, v1')
    k.e(f'v_mov_b32 v{AV}, v3')
    for i in range(1, 4): k.e(f'v_add_u32 v{AV+i}, {i*32768}, v3')
    k.e('s_lshl_b32 s33, s39, 4\ns_lshl_b32 s42, s32, 2\ns_add_u32 s33, s33, s42\ns_lshl_b32 s33, s33, 15')
    for n in range(7):
        k.e(f'v_add_u32 v4, {64*n}, v1')
        k.e('v_mul_u32_u24 v5, 4682, v4\nv_lshrrev_b32 v5, 16, v5')
        k.e('v_mul_u32_u24 v6, 14, v5\nv_sub_u32 v6, v4, v6')
        k.e('v_mul_u32_u24 v5, 7168, v5\nv_lshl_add_u32 v5, v6, 4, v5')
        k.e(f'v_subrev_u32 v{WV+n}, {1024*(n&3)}, v5')
    k.e('s_and_b32 s42, s32, 1\ns_mul_i32 s34, s42, 229376\ns_mul_i32 s43, s40, 224\ns_add_u32 s34, s34, s43')
    k.e(f's_lshr_b32 s43, s32, 1\ns_mul_i32 s35, s43, {REG}\ns_mul_i32 s42, s42, 7168\ns_add_u32 s35, s35, s42')
    k.e('v_lshrrev_b32 v4, 4, v1\nv_bfe_u32 v5, v1, 2, 2\nv_lshl_add_u32 v5, v4, 2, v5')
    k.e('v_mul_u32_u24 v5, 224, v5\nv_and_b32 v6, 3, v1')
    k.e(f'v_lshl_add_u32 v{TR}, v6, 3, v5')
    k.e(f'v_add_u32 v{TR+1}, {2*STG}, v{TR}')
    k.e('s_waitcnt lgkmcnt(0)')
    srd(k, 12, 4, 5, SZ_ACTV, WS_H2)
    k.e('s_cmp_lt_u32 s32, 2')
    k.e('s_cselect_b32 s16, s6, s8\ns_cselect_b32 s17, s7, s9')
    k.e(f's_mov_b32 s18, {1024*3584*2}\ns_mov_b32 s19, 0x20000')
    srd(k, 20, 4, 5, 2048*3584*2, WS_ACT)
    for i in range(224): k.e(f'v_accvgpr_write_b32 a{i}, 0')
    vm = Counter()
    def dma(s):
        slot = s % 4
        out = []
        for n in range(7):
            if n % 4 == 0:
                out.append((f's_add_u32 s43, s35, {slot*STG + 4096*(n//4)}', None))
                out.append(('s_mov_b32 m0, s43', None))
            out.append((f'buffer_load_dwordx4 v{WV+n}, s[16:19], s34 offen offset:{1024*(n&3)} lds', ('W', s)))
        out.append((f's_add_u32 s34, s34, {64*7168}', None))
        return out
    def actl(kk):
        out = []
        for i in range(4):
            b = ACT + 16*(kk % 4) + 4*i
            out.append((f'buffer_load_dwordx4 v[{b}:{b+3}], v{AV+i}, s[12:15], s33 offen', ('A', kk)))
        out.append(('s_add_u32 s33, s33, 1024', None))
        return out
    def rd(gi):
        kk, j = divmod(gi, 14)
        s = kk // 2; slot = s % 4
        b = j // 2; reg = j & 1
        buf = WF + 4*(gi % 4)
        base = (slot & 1) * STG + reg * REG + (kk & 1) * 7168 + b * 32
        a = TR + (slot >> 1)
        return [f'ds_read_b64_tr_b16 v[{buf+2*t}:{buf+2*t+1}], v{a} offset:{base + t*3584}' for t in range(2)]
    for s in range(2):
        for txt, tag in dma(s):
            k.e(txt)
            if tag: vm.issue(tag)
    for kk in range(3):
        for txt, tag in actl(kk):
            k.e(txt)
            if tag: vm.issue(tag)
    k.e(f's_waitcnt vmcnt({vm.count_after(("W", 0))})')
    k.e('s_barrier')
    for gi in range(3):
        for t in rd(gi): k.e(t)
    NG = 16 * 28
    def group(gi, last_trip):
        kk, j = divmod(gi, 14)
        s = kk // 2
        fill = []
        pre = []
        if j == 0:
            pre.append(f's_waitcnt vmcnt({vm.count_after(("A", kk))}) lgkmcnt(4)')
        else:
            rem = min(3, NGT - gi) - 1
            pre.append(f's_waitcnt lgkmcnt({2*rem})')
        nxt = gi + 3
        if nxt < NGT:
            if nxt % 28 == 0:
                fill.append((f's_waitcnt vmcnt({vm.count_after(("W", nxt // 28))})', None))
                fill.append(('s_barrier', None))
            fill += [(t, None) for t in rd(nxt)]
        extra = []
        if j == 1 and kk + 3 < NKT: extra += actl(kk + 3)
        if (kk & 1) == 0 and j == 4 and s + 2 < NST: extra += dma(s + 2)[:6]
        if (kk & 1) == 0 and j == 8 and s + 2 < NST: extra += dma(s + 2)[6:]
        fill += extra
        for p in pre: k.e(p)
        b = j // 2; reg = j & 1
        buf = WF + 4*(gi % 4)
        fi = 0
        per = (len(fill) + 3) // 4
        for i in range(4):
            acc = ((reg * 7 + b) * 4 + i) * 4
            ab = ACT + 16*(kk % 4) + 4*i
            k.e(f'v_mfma_f32_16x16x32_bf16 a[{acc}:{acc+3}], v[{buf}:{buf+3}], v[{ab}:{ab+3}], a[{acc}:{acc+3}]')
            for _ in range(per):
                if fi < len(fill):
                    k.e(fill[fi][0])
                    if fill[fi][1]: vm.issue(fill[fi][1])
                    fi += 1
        assert fi == len(fill)
    BIG = 10**9
    NGT = BIG; NKT = BIG; NST = BIG
    k.e('s_mov_b32 s36, 3')
    def gbody(t):
        for gi in range(112*t, 112*t + 112): group(gi, False)
    emit_loop(k, f'L_{name}_loop', gbody)
    k.e('s_sub_u32 s36, s36, 1\ns_cmp_lg_u32 s36, 0')
    k.e(f's_cbranch_scc1 L_{name}_loop')
    NGT = 336; NKT = 24; NST = 12
    for gi in range(224, 336): group(gi, True)
    k.e(f's_lshl_b32 s33, s39, 4\ns_lshl_b32 s42, s32, 2\ns_add_u32 s33, s33, s42\ns_mul_i32 s33, s33, {112*1024}')
    k.e('s_mul_i32 s41, s40, 7')
    for b in range(7):
        k.e(f's_add_u32 s42, s41, {b}\ns_lshr_b32 s43, s42, 1\ns_lshl_b32 s43, s43, 10\ns_and_b32 s42, s42, 1\ns_lshl_b32 s42, s42, 3\ns_add_u32 s43, s43, s42\ns_add_u32 s{44+b}, s43, s33')
    k.e(f'v_mov_b32 v{AV}, v3')
    for i in range(1, 4): k.e(f'v_add_u32 v{AV+i}, {i*112*1024}, v3')
    k.e(f's_mov_b32 s52, {f32(-1.4426950408889634)}')
    T = ACT
    cnt = 0
    for b in range(7):
        for i in range(4):
            g = ((0 * 7 + b) * 4 + i) * 4; u = ((1 * 7 + b) * 4 + i) * 4
            t = T + 16 * (cnt % 4); cnt += 1
            for r in range(4): k.e(f'v_accvgpr_read_b32 v{t+r}, a{g+r}')
            for r in range(4): k.e(f'v_accvgpr_read_b32 v{t+4+r}, a{u+r}')
            for r in range(4): k.e(f'v_mul_f32 v{t+8+r}, s52, v{t+r}')
            for r in range(4): k.e(f'v_exp_f32 v{t+8+r}, v{t+8+r}')
            for r in range(4): k.e(f'v_mul_f32 v{t+r}, v{t+r}, v{t+4+r}')
            for r in range(4): k.e(f'v_add_f32 v{t+8+r}, 1.0, v{t+8+r}')
            for r in range(4): k.e(f'v_rcp_f32 v{t+8+r}, v{t+8+r}')
            k.e('s_nop 0')
            for r in range(4): k.e(f'v_mul_f32 v{t+r}, v{t+r}, v{t+8+r}')
            k.e(f'v_cvt_pk_bf16_f32 v{t+12}, v{t}, v{t+1}')
            k.e(f'v_cvt_pk_bf16_f32 v{t+13}, v{t+2}, v{t+3}')
            k.e(f'buffer_store_dwordx2 v[{t+12}:{t+13}], v{AV+i}, s[20:23], s{44+b} offen')
    k.label(f'L_{name}_end')
    k.e('s_endpgm')
    return k.finish(vgpr=104, agpr=224, sgpr=56)
```

```python
from common import *

def kern_gemm1024(which):
    name = f'{which}_kernel'
    k = Kern(name)
    if which == 'wo':
        KD, act_off, wptr, gidx = 4096, WS_O, A_WO, 2
    else:
        KD, act_off, wptr, gidx = 3584, WS_ACT, A_WD, 5
    nks = KD // 32
    nst = nks // 4
    D = 3; NB = 4
    AV = 8; WV = 16; TR = 20; WF = 24; ACT = 64; XR = 192; GV = 208
    k.e(f's_cmp_ge_u32 s2, 256\ns_cbranch_scc1 L_{name}_end')
    k.e(f's_load_dwordx2 s[4:5], s[0:1], {A_WS}')
    k.e(f's_load_dwordx2 s[6:7], s[0:1], {wptr}')
    k.e(f's_load_dwordx2 s[8:9], s[0:1], {A_X if which == "wo" else A_OUT}')
    k.e('v_lshrrev_b32 v2, 6, v0')
    k.e('v_and_b32 v1, 63, v0')
    k.e('v_readfirstlane_b32 s32, v2')
    k.e('s_and_b32 s37, s2, 7')
    k.e('s_lshr_b32 s38, s2, 3')
    k.e('s_lshr_b32 s39, s37, 1\ns_lshl_b32 s39, s39, 2\ns_lshr_b32 s40, s38, 3\ns_add_u32 s39, s39, s40')
    k.e('s_and_b32 s40, s37, 1\ns_lshl_b32 s40, s40, 3\ns_and_b32 s41, s38, 7\ns_add_u32 s40, s40, s41')
    k.e('v_lshlrev_b32 v3, 4, v1')
    k.e('s_lshl_b32 s41, s32, 1')
    for i in range(8):
        k.e(f's_add_u32 s42, s41, {i}\ns_and_b32 s42, s42, 7\ns_mul_i32 s42, s42, {nks*1024}')
        k.e(f'v_add_u32 v{AV+i}, s42, v3')
    k.e(f's_mul_i32 s33, s39, {8*nks*1024}\ns_mul_i32 s42, s32, {nst*1024}\ns_add_u32 s33, s33, s42')
    k.e('v_lshrrev_b32 v4, 3, v1')
    k.e('v_bfe_u32 v5, v1, 1, 2')
    k.e('v_bfe_u32 v6, v1, 4, 2')
    k.e('v_xor_b32 v5, v5, v6')
    k.e('v_lshlrev_b32 v5, 5, v5')
    k.e('v_and_b32 v6, 1, v1')
    k.e('v_lshl_add_u32 v5, v6, 4, v5')
    k.e(f'v_lshl_add_u32 v{WV}, v4, 11, v5')
    for q in range(1, 4): k.e(f'v_add_u32 v{WV+q}, {15360*q}, v{WV}')
    k.e(f's_mul_i32 s34, s32, {nst*65536}\ns_lshl_b32 s42, s40, 7\ns_add_u32 s34, s34, s42')
    k.e('v_lshrrev_b32 v4, 4, v1')
    k.e('v_bfe_u32 v5, v1, 2, 2')
    k.e('v_lshl_add_u32 v6, v4, 2, v5')
    k.e('v_lshlrev_b32 v7, 7, v6')
    k.e('v_bfe_u32 v6, v6, 1, 2')
    k.e('v_lshl_add_u32 v7, v6, 5, v7')
    k.e('v_and_b32 v6, 3, v1')
    k.e('v_lshl_add_u32 v7, v6, 3, v7')
    k.e('s_lshl_b32 s35, s32, 14')
    k.e(f'v_add_u32 v{TR}, s35, v7')
    for nb in range(1, 4): k.e(f'v_xor_b32 v{TR+nb}, {nb*32}, v{TR}')
    k.e('s_waitcnt lgkmcnt(0)')
    srd(k, 12, 4, 5, 2048*KD*2, act_off)
    srd(k, 16, 6, 7, KD*2048)
    srd(k, 20, 4, 5, 6144*4, WS_MOD)
    if which == 'wo':
        srd(k, 24, 8, 9, SZ_ACTV)
        srd(k, 28, 4, 5, SZ_ACTV, WS_X1)
    else:
        srd(k, 24, 4, 5, SZ_ACTV, WS_X1)
        srd(k, 28, 8, 9, SZ_ACTV)
    vm = Counter()
    k.e('v_lshlrev_b32 v5, 4, v4')
    k.e(f's_lshl_b32 s42, s40, 8\ns_add_u32 s42, s42, {gidx*4096}')
    for nb in range(4):
        k.e(f'buffer_load_dwordx4 v[{GV+4*nb}:{GV+4*nb+3}], v5, s[20:23], s42 offen offset:{nb*64}'); vm.issue('epi')
    k.e('v_and_b32 v6, 15, v1')
    if which == 'wo':
        k.e('v_lshlrev_b32 v56, 11, v6\nv_lshl_add_u32 v56, v4, 3, v56')
        k.e('s_lshl_b32 s42, s39, 18\ns_lshl_b32 s43, s32, 16\ns_add_u32 s42, s42, s43\ns_lshl_b32 s43, s40, 7\ns_add_u32 s42, s42, s43')
        for i in range(2):
            for nb in range(4):
                k.e(f'buffer_load_dwordx2 v[{XR+8*i+2*nb}:{XR+8*i+2*nb+1}], v56, s[24:27], s42 offen offset:{nb*32}'); vm.issue('epi')
            if i == 0: k.e('s_add_u32 s42, s42, 0x8000')
    else:
        k.e('s_lshl_b32 s42, s39, 18\ns_lshl_b32 s43, s32, 16\ns_add_u32 s42, s42, s43\ns_lshl_b32 s43, s40, 11\ns_add_u32 s42, s42, s43')
        for i in range(2):
            for p in range(2):
                k.e(f'buffer_load_dwordx4 v[{XR+8*i+4*p}:{XR+8*i+4*p+3}], v3, s[24:27], s42 offen offset:{p*1024}'); vm.issue('epi')
            if i == 0: k.e('s_add_u32 s42, s42, 0x8000')
    for i in range(128): k.e(f'v_accvgpr_write_b32 a{i}, 0')

    def loads_list(st):
        slot = st % 4
        out = []
        out.append((f's_add_u32 s43, s35, {slot*4096}', None))
        out.append(('s_mov_b32 m0, s43', None))
        for q in range(4):
            out.append((f'buffer_load_dwordx4 v{WV+q}, s[16:19], s34 offen offset:{q*1024} lds', ('W', st)))
        for i in range(8):
            b = ACT + 32*slot + 4*i
            out.append((f'buffer_load_dwordx4 v[{b}:{b+3}], v{AV+i}, s[12:15], s33 offen', ('A', st)))
        out.append(('s_add_u32 s33, s33, 1024', None))
        out.append(('s_add_u32 s34, s34, 0x10000', None))
        return out
    def trreads(st):
        slot = st % 4; fb = WF + 16 * (st & 1)
        return [f'ds_read_b64_tr_b16 v[{fb+4*nb+2*t}:{fb+4*nb+2*t+1}], v{TR+nb} offset:{slot*4096 + t*2048}' for nb in range(4) for t in range(2)]
    for st in range(D):
        for txt, tag in loads_list(st):
            k.e(txt)
            if tag: vm.issue(tag)
    k.e(f's_waitcnt vmcnt({vm.count_after(("W", 0))})')
    for t in trreads(0): k.e(t)

    def step(st, issue_loads, read_next):
        fill = []
        if read_next: n = vm.count_after(('W', st + 1))
        else: n = vm.count_after(('A', st))
        k.e(f's_waitcnt vmcnt({n}) lgkmcnt(0)')
        if read_next: fill += [(t, None) for t in trreads(st + 1)]
        if issue_loads: fill += loads_list(st + D)
        fb = WF + 16 * (st & 1); ab = ACT + 32 * (st % 4)
        fi = 0
        for nb in range(4):
            for i in range(8):
                acc = (i * 4 + nb) * 4
                k.e(f'v_mfma_f32_16x16x32_bf16 a[{acc}:{acc+3}], v[{fb+4*nb}:{fb+4*nb+3}], v[{ab+4*i}:{ab+4*i+3}], a[{acc}:{acc+3}]')
                if fi < len(fill):
                    k.e(fill[fi][0])
                    if fill[fi][1]: vm.issue(fill[fi][1])
                    fi += 1
        assert fi == len(fill)
    ntrip = (nst - 4) // 4
    assert nst % 4 == 0
    k.e(f's_mov_b32 s36, {ntrip}')
    def wbody(t):
        for st in range(4*t, 4*t + 4): step(st, True, True)
    emit_loop(k, f'L_{name}_loop', wbody)
    k.e('s_sub_u32 s36, s36, 1\ns_cmp_lg_u32 s36, 0')
    k.e(f's_cbranch_scc1 L_{name}_loop')
    base = 8
    for j in range(4):
        st = base + j
        step(st, issue_loads=(j + D < 4), read_next=(j < 3))
    k.e('s_barrier')
    for delta in (1, 2, 3):
        k.e(f's_add_u32 s42, s32, {delta}\ns_and_b32 s42, s42, 3\ns_mul_i32 s42, s42, {3*8192}\ns_add_u32 s42, s42, {(delta-1)*8192}')
        k.e(f'v_add_u32 v{56+delta}, s42, v3')
    for delta in (1, 2, 3):
        for ii in range(2):
            for nb in range(4):
                acc = ((2*delta + ii) * 4 + nb) * 4
                k.e(f'ds_write_b128 v{56+delta}, a[{acc}:{acc+3}] offset:{(ii*4+nb)*1024}')
    k.e('s_waitcnt lgkmcnt(0)\ns_barrier')
    k.e(f's_mul_i32 s42, s32, {3*8192}\nv_add_u32 v56, s42, v3')
    for delta in (1, 2, 3):
        for b in range(8):
            r = ACT + (delta-1)*32 + 4*b
            k.e(f'ds_read_b128 v[{r}:{r+3}], v56 offset:{(delta-1)*8192 + b*1024}')
    OWN = ACT + 96
    for i in range(32): k.e(f'v_accvgpr_read_b32 v{OWN+i}, a{i}')
    k.e('s_waitcnt lgkmcnt(0)')
    for i in range(32):
        k.e(f'v_add_f32 v{ACT+i}, v{ACT+i}, v{ACT+32+i}')
        k.e(f'v_add_f32 v{OWN+i}, v{OWN+i}, v{ACT+64+i}')
        k.e(f'v_add_f32 v{OWN+i}, v{OWN+i}, v{ACT+i}')
    k.e('s_waitcnt vmcnt(0)')
    if which == 'wo':
        for ii in range(2):
            for nb in range(4):
                for u in range(2):
                    xr = XR + 8*ii + 2*nb + u
                    o = OWN + (ii*4+nb)*4 + 2*u
                    k.e(f'v_lshlrev_b32 v56, 16, v{xr}')
                    k.e(f'v_and_b32 v57, 0xffff0000, v{xr}')
                    k.e(f'v_fma_f32 v{o}, v{o}, v{GV+4*nb+2*u}, v56')
                    k.e(f'v_fma_f32 v{o+1}, v{o+1}, v{GV+4*nb+2*u+1}, v57')
                    k.e(f'v_cvt_pk_bf16_f32 v{ACT + ii*8 + nb*2 + u}, v{o}, v{o+1}')
        k.e('s_lshl_b32 s42, s39, 18\ns_lshl_b32 s43, s32, 16\ns_add_u32 s42, s42, s43\ns_lshl_b32 s43, s40, 11\ns_add_u32 s42, s42, s43')
        for ii in range(2):
            for p in range(2):
                r = ACT + ii*8 + p*4
                k.e(f'buffer_store_dwordx4 v[{r}:{r+3}], v3, s[28:31], s42 offen offset:{p*1024}')
            if ii == 0: k.e('s_add_u32 s42, s42, 0x8000')
    else:
        for ii in range(2):
            for nb in range(4):
                for u in range(2):
                    xr = XR + 8*ii + 2*nb + u
                    o = OWN + (ii*4+nb)*4 + 2*u
                    k.e(f'v_lshlrev_b32 v56, 16, v{xr}')
                    k.e(f'v_and_b32 v57, 0xffff0000, v{xr}')
                    k.e(f'v_fma_f32 v{o}, v{o}, v{GV+4*nb+2*u}, v56')
                    k.e(f'v_fma_f32 v{o+1}, v{o+1}, v{GV+4*nb+2*u+1}, v57')
                    k.e(f'v_cvt_pk_bf16_f32 v{ACT + ii*8 + nb*2 + u}, v{o}, v{o+1}')
        for ii in range(2):
            for p in range(2):
                r = ACT + ii*8 + p*4
                for u in range(2):
                    k.e(f'v_permlane32_swap_b32 v{r+u}, v{r+2+u}')
                for u in range(2):
                    k.e(f'v_permlane16_swap_b32 v{r+u}, v{r+2+u}')
        k.e('v_lshlrev_b32 v56, 11, v6\nv_lshl_add_u32 v56, v4, 4, v56')
        k.e('s_lshl_b32 s42, s39, 18\ns_lshl_b32 s43, s32, 16\ns_add_u32 s42, s42, s43\ns_lshl_b32 s43, s40, 7\ns_add_u32 s42, s42, s43')
        for ii in range(2):
            for p in range(2):
                r = ACT + ii*8 + p*4
                k.e(f'buffer_store_dwordx4 v[{r}:{r+3}], v56, s[28:31], s42 offen offset:{p*64}')
            if ii == 0: k.e('s_add_u32 s42, s42, 0x8000')
    k.label(f'L_{name}_end')
    k.e('s_endpgm')
    return k.finish(vgpr=224, agpr=128, sgpr=48)
```

```python
from common import *

def kern_mod():
    k = Kern('mod_kernel')
    k.e('s_cmp_ge_u32 s2, 96\ns_cbranch_scc1 L_mod_end')
    k.e(f's_load_dwordx2 s[4:5], s[0:1], {A_C}')
    k.e(f's_load_dwordx2 s[6:7], s[0:1], {A_WMOD}')
    k.e(f's_load_dwordx2 s[8:9], s[0:1], {A_WS}')
    k.e('v_and_b32 v1, 7, v0')
    k.e('v_lshrrev_b32 v2, 3, v0')
    k.e('s_lshl_b32 s3, s2, 7')
    k.e('v_mul_u32_u24 v3, 0x3000, v2')
    k.e('v_lshl_add_u32 v3, v1, 4, v3')
    k.e('v_add_u32 v3, s3, v3')
    k.e('v_lshlrev_b32 v4, 1, v0')
    k.e('s_waitcnt lgkmcnt(0)')
    srd(k, 12, 6, 7, 1024*6144*2)
    srd(k, 16, 4, 5, 2048)
    srd(k, 20, 8, 9, 6144*4, WS_MOD)
    k.e('buffer_load_ushort v5, v4, s[16:19], 0 offen')
    for p in range(8):
        k.e(f's_mov_b32 s24, {p*128*12288}')
        k.e(f'buffer_load_dwordx4 v[{16+4*p}:{19+4*p}], v3, s[12:15], s24 offen nt')
    k.e('s_waitcnt vmcnt(8)')
    k.e('v_lshlrev_b32 v5, 16, v5')
    k.e(f'v_mul_f32 v6, {f32(-1.4426950408889634)}, v5')
    k.e('v_exp_f32 v6, v6')
    k.e('v_add_f32 v6, 1.0, v6')
    k.e('v_rcp_f32 v6, v6')
    k.e('v_mul_f32 v6, v5, v6')
    k.e('v_cvt_pk_bf16_f32 v6, v6, v6')
    k.e('v_lshlrev_b32 v6, 16, v6')
    k.e('v_lshlrev_b32 v4, 2, v0')
    k.e('ds_write_b32 v4, v6')
    k.e('s_waitcnt lgkmcnt(0)\ns_barrier')
    k.e('v_lshlrev_b32 v4, 2, v2')
    for p in range(8):
        k.e(f'ds_read_b32 v{48+p}, v4 offset:{p*512}')
    for j in range(8): k.e(f'v_mov_b32 v{56+j}, 0')
    for p in range(8):
        k.e(f's_waitcnt vmcnt({7-p}) lgkmcnt({7-p})')
        for q in range(4):
            w = 16 + 4*p + q
            k.e(f'v_lshlrev_b32 v64, 16, v{w}')
            k.e(f'v_and_b32 v65, 0xffff0000, v{w}')
            k.e(f'v_fmac_f32 v{56+2*q}, v{48+p}, v64')
            k.e(f'v_fmac_f32 v{57+2*q}, v{48+p}, v65')
    for j in range(8): xor8_sum(k, 56+j)
    for j in range(8): xor16_sum(k, 56+j, 64+j)
    for j in range(8): xor32_sum(k, 56+j, 64+j)
    k.e('v_lshrrev_b32 v4, 6, v0')
    k.e('v_lshlrev_b32 v4, 8, v4')
    k.e('v_lshl_add_u32 v4, v1, 5, v4')
    k.e('v_and_b32 v5, 63, v0')
    k.e('v_cmp_gt_u32 vcc, 8, v5')
    k.e('s_and_saveexec_b64 s[26:27], vcc')
    k.e('ds_write_b128 v4, v[56:59] offset:4096')
    k.e('ds_write_b128 v4, v[60:63] offset:4112')
    k.e('s_mov_b64 exec, s[26:27]')
    k.e('s_waitcnt lgkmcnt(0)\ns_barrier')
    k.e('v_cmp_gt_u32 vcc, 64, v0')
    k.e('s_and_saveexec_b64 s[26:27], vcc')
    k.e('s_cbranch_execz L_mod_end')
    k.e('v_lshlrev_b32 v4, 2, v0')
    for w in range(16):
        k.e(f'ds_read_b32 v{16+w}, v4 offset:{4096 + w*256}')
    k.e('s_waitcnt lgkmcnt(0)')
    for w in range(1, 16):
        k.e(f'v_add_f32 v16, v16, v{16+w}')
    k.e('v_cvt_pk_bf16_f32 v16, v16, v16')
    k.e('v_lshlrev_b32 v16, 16, v16')
    k.e('s_lshl_b32 s3, s2, 8')
    k.e('v_add_u32 v4, s3, v4')
    k.e('buffer_store_dword v16, v4, s[20:23], 0 offen')
    k.label('L_mod_end')
    k.e('s_endpgm')
    return k.finish(vgpr=72, agpr=0, sgpr=32)

def kern_ln(which):
    name = f'ln{which}_kernel'
    k = Kern(name)
    k.e(f's_cmp_ge_u32 s2, 256\ns_cbranch_scc1 L_{name}_end')
    k.e(f's_load_dwordx2 s[4:5], s[0:1], {A_X}')
    k.e(f's_load_dwordx2 s[8:9], s[0:1], {A_WS}')
    k.e('v_and_b32 v1, 7, v0')
    k.e('v_bfe_u32 v2, v0, 3, 2')
    k.e('v_bfe_u32 v3, v0, 5, 1')
    k.e('v_lshrrev_b32 v4, 6, v0')
    k.e('v_lshl_add_u32 v5, v4, 3, v3')
    k.e('s_lshr_b32 s10, s2, 1')
    k.e('s_lshl_b32 s10, s10, 15')
    k.e('s_and_b32 s11, s2, 1')
    k.e('s_lshl_b32 s11, s11, 7')
    k.e('s_add_u32 s10, s10, s11')
    k.e('v_lshlrev_b32 v6, 10, v5')
    k.e('v_lshl_add_u32 v6, v2, 8, v6')
    k.e('v_lshl_add_u32 v6, v1, 4, v6')
    k.e('v_add_u32 v6, s10, v6')
    if which == 1:
        k.e('s_lshl_b32 s11, s2, 14')
        k.e('v_lshlrev_b32 v7, 11, v1')
        k.e('v_lshl_add_u32 v7, v5, 6, v7')
        k.e('v_lshl_add_u32 v7, v2, 3, v7')
        k.e('v_add_u32 v7, s11, v7')
    k.e('v_lshlrev_b32 v8, 7, v5')
    k.e('v_lshl_add_u32 v8, v2, 4, v8')
    k.e('s_waitcnt lgkmcnt(0)')
    srd(k, 12, 8, 9, 6144*4, WS_MOD)
    if which == 1:
        srd(k, 16, 4, 5, SZ_ACTV)
        srd(k, 20, 8, 9, SZ_ACTV, WS_H1)
    else:
        srd(k, 16, 8, 9, SZ_ACTV, WS_X1)
        srd(k, 20, 8, 9, SZ_ACTV, WS_H2)
    X = 16
    for i in range(4):
        if which == 1:
            for t in range(2):
                k.e(f'buffer_load_dwordx2 v[{X+4*i+2*t}:{X+4*i+2*t+1}], v7, s[16:19], 0 offen offset:{i*128 + t*32}')
        else:
            k.e(f's_mov_b32 s24, {i*2048}')
            k.e(f'buffer_load_dwordx4 v[{X+4*i}:{X+4*i+3}], v6, s[16:19], s24 offen')
    nx = 8 if which == 1 else 4
    shift_i, scale_i = (0, 1) if which == 1 else (3, 4)
    SC, SH = 64, 96
    for i in range(4):
        for t in range(2):
            k.e(f's_mov_b32 s24, {scale_i*4096}')
            k.e(f'buffer_load_dwordx4 v[{SC+8*i+4*t}:{SC+8*i+4*t+3}], v8, s[12:15], s24 offen offset:{i*256 + t*64}')
            k.e(f's_mov_b32 s24, {shift_i*4096}')
            k.e(f'buffer_load_dwordx4 v[{SH+8*i+4*t}:{SH+8*i+4*t+3}], v8, s[12:15], s24 offen offset:{i*256 + t*64}')
    F = 32
    k.e('s_waitcnt vmcnt(16)')
    for i in range(16):
        k.e(f'v_lshlrev_b32 v{F+2*i}, 16, v{X+i}')
        k.e(f'v_and_b32 v{F+2*i+1}, 0xffff0000, v{X+i}')
    k.e(f'v_add_f32 v10, v{F}, v{F+1}')
    k.e(f'v_add_f32 v11, v{F+2}, v{F+3}')
    for i in range(2, 16):
        k.e(f'v_add_f32 v{10 + (i & 1)}, v{10 + (i & 1)}, v{F+2*i}')
        k.e(f'v_add_f32 v{10 + (i & 1)}, v{10 + (i & 1)}, v{F+2*i+1}')
    k.e('v_add_f32 v10, v10, v11')
    def wg_reduce(ldsoff):
        xor8_sum(k, 10); xor16_sum(k, 10, 11); xor32_sum(k, 10, 11)
        k.e('v_lshlrev_b32 v12, 5, v4')
        k.e('v_lshl_add_u32 v12, v1, 2, v12')
        k.e(f'ds_write_b32 v12, v10 offset:{ldsoff}')
        k.e('s_waitcnt lgkmcnt(0)\ns_barrier')
        k.e('v_lshlrev_b32 v12, 2, v1')
        for w in range(4): k.e(f'ds_read_b32 v{12+1+w}, v12 offset:{ldsoff + w*32}')
        k.e('s_waitcnt lgkmcnt(0)')
        k.e('v_add_f32 v13, v13, v14\nv_add_f32 v15, v15, v16\nv_add_f32 v10, v13, v15')
    wg_reduce(0)
    k.e(f'v_mul_f32 v10, {f32(1/1024)}, v10')
    for i in range(32): k.e(f'v_sub_f32 v{F+i}, v{F+i}, v10')
    k.e(f'v_mul_f32 v10, v{F}, v{F}')
    k.e(f'v_mul_f32 v11, v{F+1}, v{F+1}')
    for i in range(2, 32):
        k.e(f'v_fmac_f32 v{10 + (i & 1)}, v{F+i}, v{F+i}')
    k.e('v_add_f32 v10, v10, v11')
    wg_reduce(128)
    k.e(f'v_mul_f32 v10, {f32(1/1024)}, v10')
    k.e(f'v_add_f32 v10, {f32(1e-5)}, v10')
    k.e('v_rsq_f32 v10, v10')
    k.e('s_waitcnt vmcnt(0)')
    for i in range(0, 32, 2):
        a, b = SC+i, SC+i+1
        k.e(f'v_add_f32 v{a}, 1.0, v{a}')
        k.e(f'v_add_f32 v{b}, 1.0, v{b}')
        k.e(f'v_cvt_pk_bf16_f32 v11, v{a}, v{b}')
        k.e(f'v_lshlrev_b32 v{a}, 16, v11')
        k.e(f'v_and_b32 v{b}, 0xffff0000, v11')
    for i in range(32):
        k.e(f'v_mul_f32 v{F+i}, v{F+i}, v10')
        k.e(f'v_fma_f32 v{F+i}, v{F+i}, v{SC+i}, v{SH+i}')
    if which == 1:
        k.e(f's_mov_b32 s25, {f32(QSCALE)}')
        for i in range(32): k.e(f'v_mul_f32 v{F+i}, s25, v{F+i}')
    for i in range(16):
        k.e(f'v_cvt_pk_bf16_f32 v{X+i}, v{F+2*i}, v{F+2*i+1}')
    for i in range(4):
        k.e(f's_mov_b32 s24, {i*2048}')
        k.e(f'buffer_store_dwordx4 v[{X+4*i}:{X+4*i+3}], v6, s[20:23], s24 offen')
    k.label(f'L_{name}_end')
    k.e('s_endpgm')
    return k.finish(vgpr=128, agpr=0, sgpr=32)
```

```python
import sys
from k_prep import *
from k_gemm1024 import *
from k_gateup import *
from k_attn import *
def build(path, order=None):
    ks = {
      'mod': (kern_mod, 96, 1024, 8192),
      'ln1': (lambda: kern_ln(1), 256, 256, 1024),
      'attn': (kern_attn, 256, 256, 131072),
      'wo': (lambda: kern_gemm1024('wo'), 256, 256, 98304),
      'ln2': (lambda: kern_ln(2), 256, 256, 1024),
      'gateup': (kern_gateup, 256, 256, 114688),
      'down': (lambda: kern_gemm1024('down'), 256, 256, 98304),
    }
    order = order or ['mod', 'ln1', 'attn', 'wo', 'ln2', 'gateup', 'down']
    hdr = open('adaLN_cond__mha_block_cached__swiglu_ffn__prompt.s.ref').read().split('; Override launch')[0]
    s = hdr
    for o in order:
        f, g, b, l = ks[o]
        s += f'; @launch kernel={o}_kernel grid=({g},1,1) block=({b},1,1) lds={l}\n'
    s += '.amdgcn_target "amdgcn-amd-amdhsa--gfx950"\n'
    for o in order:
        s += ks[o][0]()
    open(path, 'w').write(s)
    print('wrote', path, len(s), 'bytes', s.count('\n'), 'lines')
if __name__ == '__main__':
    build(sys.argv[1] if len(sys.argv) > 1 else 'full.s')
```

```python
import re

def regs(tok):
    tok = tok.strip()
    neg = tok.lstrip('-')
    if neg.startswith('abs(') or neg.startswith('|'):
        neg = neg.replace('abs(', '').replace(')', '').replace('|', '')
    tok = neg
    m = re.fullmatch(r'([vas])(\d+)', tok)
    if m: return [(m.group(1), int(m.group(2)))]
    m = re.fullmatch(r'([vas])\[(\d+):(\d+)\]', tok)
    if m: return [(m.group(1), i) for i in range(int(m.group(2)), int(m.group(3)) + 1)]
    if tok == 'vcc': return [('s', 'vcc')]
    if tok == 'exec': return [('s', 'exec')]
    if tok == 'm0': return [('s', 'm0')]
    if tok in ('vcc_lo', 'vcc_hi'): return [('s', 'vcc')]
    return []

TRANS = ('v_exp_f32', 'v_log_f32', 'v_rcp_f32', 'v_rsq_f32', 'v_sqrt_f32', 'v_sin_f32', 'v_cos_f32', 'v_rcp_iflag_f32')

class Ins:
    def __init__(self, text):
        self.text = text
        t = text.split(';')[0].strip()
        self.label = None; self.op = None
        self.defs = set(); self.uses = set(); self.kind = 'other'
        if not t: self.kind = 'empty'; return
        if t.endswith(':'):
            self.kind = 'label'; self.label = t[:-1]; return
        if t.startswith('.'):
            self.kind = 'dir'; return
        parts = t.split(None, 1)
        op = parts[0]; self.op = op
        rest = parts[1] if len(parts) > 1 else ''
        ops = [o.strip() for o in re.split(r',(?![^\[]*\])', rest)] if rest else []
        mods = ''
        if ops:
            last = ops[-1].split(None, 1)
            ops[-1] = last[0]
            mods = last[1] if len(last) > 1 else ''
        self.ops = ops; self.mods = mods
        R = [regs(o) for o in ops]
        base = re.sub(r'_(e32|e64|dpp|sdwa)$', '', op)
        self.base = base
        self.dpp = ('row_' in mods or 'quad_perm' in mods or op.endswith('_dpp'))
        if base.startswith('v_mfma'):
            self.kind = 'mfma'
            self.D = R[0]; self.A = R[1]; self.B = R[2]; self.C = R[3]
            self.defs = set(R[0]); self.uses = set(R[1] + R[2] + R[3])
            self.passes = 4 if '16x16x32' in base else 8
        elif base.startswith('v_cmp'):
            self.kind = 'valu'
            self.defs = set(R[0]); self.uses = set(sum(R[1:], []))
            if base.startswith('v_cmpx'): self.defs.add(('s', 'exec'))
        elif base in ('v_readfirstlane_b32', 'v_readlane_b32'):
            self.kind = 'valu'; self.defs = set(R[0]); self.uses = set(sum(R[1:], [])); self.lane_read = True
        elif base.startswith('v_permlane'):
            self.kind = 'valu'; self.defs = set(R[0] + R[1]); self.uses = set(R[0] + R[1]); self.permlane = True
        elif base.startswith('v_add_co') or base.startswith('v_sub_co') or base.startswith('v_addc_co') or base.startswith('v_subb_co'):
            self.kind = 'valu'; self.defs = set(R[0] + R[1]); self.uses = set(sum(R[2:], []))
        elif base.startswith('v_'):
            self.kind = 'valu'; self.defs = set(R[0]); self.uses = set(sum(R[1:], []))
            if base.startswith('v_fmac') or base.startswith('v_mac') or base.startswith('v_dot2c') or base == 'v_writelane_b32' or self.dpp:
                self.uses |= set(R[0])
            if base == 'v_cndmask_b32' and len(ops) == 3: self.uses.add(('s', 'vcc'))
        elif base.startswith('ds_read') or base.startswith('ds_bpermute') or base.startswith('ds_permute') or base.startswith('ds_swizzle'):
            self.kind = 'ds'; self.defs = set(R[0]); self.uses = set(sum(R[1:], []))
        elif base.startswith('ds_'):
            self.kind = 'ds'; self.uses = set(sum(R, []))
        elif base.startswith('buffer_load') or base.startswith('global_load'):
            self.kind = 'vmem'
            if 'lds' in mods.split() or 'lds' in base:
                self.uses = set(sum(R, [])); self.uses.add(('s', 'm0')); self.ldsdma = True
            else:
                self.defs = set(R[0]); self.uses = set(sum(R[1:], []))
        elif base.startswith('buffer_store') or base.startswith('global_store'):
            self.kind = 'vmem'; self.uses = set(sum(R, [])); self.store = True
            if base.startswith('buffer_store'): self.sdata = set(R[0])
            else: self.sdata = set(R[1])
            self.wide = ('x3' in base or 'x4' in base)
        elif base.startswith('buffer_atomic') or base.startswith('global_atomic'):
            self.kind = 'vmem'; self.uses = set(sum(R, []))
            if 'sc0' in mods.split(): self.defs = set(R[0])
        elif base.startswith('buffer_') :
            self.kind = 'vmem'
        elif base == 's_nop':
            self.kind = 'nop'; self.n = int(ops[0], 0) + 1
        elif base.startswith('s_cbranch') or base == 's_branch':
            self.kind = 'branch'; self.target = ops[0]
            if 'vcc' in base: self.uses.add(('s', 'vcc'))
        elif base.startswith('s_cmp') or base.startswith('s_bitcmp'):
            self.kind = 'salu'; self.uses = set(sum(R, []))
        elif base in ('s_waitcnt', 's_barrier', 's_endpgm', 's_setprio', 's_sleep'):
            self.kind = 'ctl'
        elif base.startswith('s_load') or base.startswith('s_memtime') or base.startswith('s_memrealtime'):
            self.kind = 'smem'; self.defs = set(R[0]); self.uses = set(sum(R[1:], []))
        elif base.startswith('s_'):
            self.kind = 'salu'; self.defs = set(R[0]); self.uses = set(sum(R[1:], []))
            if 'saveexec' in base: self.defs.add(('s', 'exec')); self.uses.add(('s', 'exec'))
        else:
            raise ValueError('unknown instruction: ' + text)
    def ws(self):
        if self.kind == 'nop': return self.n
        if self.kind in ('label', 'dir', 'empty'): return 0
        return 1

def vregs(s): return {r for r in s if r[0] in 'va'}
def sregs(s): return {r for r in s if r[0] == 's'}

def need_ws(p, c):
    n = 0
    if p.kind == 'valu':
        vd = vregs(p.defs); sd = sregs(p.defs)
        if vd:
            if c.kind == 'mfma' and vd & c.uses: n = max(n, 2)
            if c.kind == 'valu':
                if getattr(c, 'permlane', False) and vd & c.uses: n = max(n, 2)
                if c.dpp and vd & c.uses: n = max(n, 2)
                if getattr(c, 'lane_read', False) and vd & c.uses: n = max(n, 1)
                if p.base in TRANS and vd & (c.uses | set()) and c.base not in TRANS: n = max(n, 1)
                if p.base in TRANS and vd & c.uses: n = max(n, 1)
        if sd:
            if c.kind == 'valu' and (sd & c.uses):
                n = max(n, 2)
                if getattr(c, 'lane_read', False) or c.base == 'v_writelane_b32': n = max(n, 4)
            if c.kind == 'vmem' and (sd & c.uses): n = max(n, 5)
            if c.kind in ('salu', 'smem') and (sd & c.uses) and ('s', 'exec') not in sd: n = max(n, 1)
            if ('s', 'exec') in sd and c.kind in ('mfma',): n = max(n, 4)
            if ('s', 'exec') in sd and c.kind == 'valu' and (c.dpp): n = max(n, 5)
    if p.kind == 'salu':
        if ('s', 'm0') in p.defs and getattr(c, 'ldsdma', False): n = max(n, 1)
    if p.kind == 'mfma':
        D = set(p.D)
        big = {4: 8, 8: 12}[p.passes]
        if c.kind == 'mfma':
            if D & (set(c.A) | set(c.B)): n = max(n, big)
            if D & set(c.C):
                if c.C != p.D or c.passes != p.passes: n = max(n, {4: 6, 8: 10}[p.passes])
        elif c.kind in ('valu', 'ds', 'vmem'):
            if D & (c.uses | c.defs): n = max(n, big)
        if c.kind == 'valu' and set(p.C) & c.defs: n = max(n, {4: 3, 8: 7}[p.passes])
    if p.kind == 'vmem' and getattr(p, 'store', False) and p.wide:
        if c.kind == 'valu' and p.sdata & c.defs: n = max(n, 2)
        elif c.kind in ('ds', 'vmem', 'mfma') and p.sdata & c.defs: n = max(n, 1)
    return n

WINDOW = 14
def fix_hazards(lines, name='', verbose=True):
    ins = [Ins(l) for l in lines]
    out = []
    nfix = 0
    def required(hist, c):
        dist = 0; need = 0
        for p in reversed(hist):
            r = need_ws(p, c)
            if r > dist: need = max(need, r - dist)
            dist += p.ws()
            if dist >= WINDOW + 8: break
        return need
    hist = []
    for c in ins:
        if c.kind in ('label', 'dir', 'empty'):
            out.append(c); continue
        need = required(hist, c)
        if need > 0:
            nop = Ins(f's_nop {need - 1}')
            out.append(nop); hist.append(nop); nfix += 1
            if verbose: print(f'[haz {name}] inserted s_nop {need-1} before: {c.text.strip()}')
        out.append(c); hist.append(c)
        if c.kind == 'branch' and c.op == 's_branch' or c.op == 's_endpgm': hist = []
        if len(hist) > 64: hist = hist[-64:]
    lab = {c.label: i for i, c in enumerate(out) if c.kind == 'label'}
    for i, c in enumerate(out):
        if c.kind == 'branch' and c.target in lab:
            h = [x for x in out[max(0, i - 40):i + 1] if x.kind not in ('label', 'dir', 'empty')]
            j = lab[c.target]
            cnt = 0
            for t in out[j:j + 60]:
                if t.kind in ('label', 'dir', 'empty'): continue
                need = required(h, t)
                if need > 0:
                    raise RuntimeError(f'[haz {name}] hazard across branch {c.text.strip()} -> {t.text.strip()} needs {need} more')
                h.append(t); cnt += t.ws()
                if cnt > WINDOW + 8 or t.kind == 'branch' and t.op == 's_branch': break
    return [c.text for c in out], nfix

class Counter:
    def __init__(self): self.q = []
    def issue(self, tag, n=1):
        for _ in range(n): self.q.append(tag)
    def count_after(self, tag):
        for i in range(len(self.q) - 1, -1, -1):
            if self.q[i] == tag: return len(self.q) - 1 - i
        return None

class Kern:
    def __init__(self, name):
        self.name = name; self.L = []
    def e(self, s):
        for l in s.split('\n'):
            l = l.strip()
            if l: self.L.append(l)
    def label(self, l): self.L.append(f'{l}:')
    stamps = False
    sv = 250
    def stamp(self, i):
        if not Kern.stamps: return
        self.e(f's_memrealtime s[68:69]\ns_memtime s[66:67]\ns_waitcnt lgkmcnt(0)\ns_mov_b32 s{70+i}, s68\ns_mov_b32 s{80+i}, s66')
        self.nst = max(getattr(self, 'nst', 0), i + 1)
    def flush_stamps(self, wave_sgpr):
        if not Kern.stamps: return
        self.e(f's_load_dwordx2 s[66:67], s[0:1], 104\ns_waitcnt lgkmcnt(0)')
        self.e(f's_add_u32 s66, s66, {hex(0x8000000 + self.kidx*0x10000)}\ns_addc_u32 s67, s67, 0')
        self.e(f's_lshl_b32 s68, s2, 8\ns_lshl_b32 s69, s{wave_sgpr}, 6\ns_add_u32 s68, s68, s69\nv_mov_b32 v{self.sv}, s68')
        for i in range(self.nst):
            self.e(f'v_mov_b32 v{self.sv+1}, s{70+i}')
            self.e(f'global_store_dword v{self.sv}, v{self.sv+1}, s[66:67] offset:{4*i}')
            self.e('s_nop 0')
            self.e(f'v_mov_b32 v{self.sv+1}, s{80+i}')
            self.e(f'global_store_dword v{self.sv}, v{self.sv+1}, s[66:67] offset:{32+4*i}')
            self.e('s_nop 0')
    def finish(self, vgpr, agpr, sgpr=96, verbose=True):
        if Kern.stamps:
            sgpr = 96
            if vgpr < self.sv + 2: vgpr = self.sv + 2
        body, nfix = fix_hazards(self.L, self.name, verbose)
        acc = (vgpr + 3) // 4 * 4
        total = acc + agpr if agpr else vgpr
        hdr = f'.text\n.globl {self.name}\n.p2align 8\n.type {self.name},@function\n{self.name}:\n'
        kd = f'''.section .rodata,"a"
.p2align 6
.amdhsa_kernel {self.name}
  .amdhsa_next_free_vgpr {total}
  .amdhsa_next_free_sgpr {sgpr}
  .amdhsa_accum_offset {acc}
  .amdhsa_group_segment_fixed_size 0
  .amdhsa_kernarg_size 112
  .amdhsa_user_sgpr_count 2
  .amdhsa_user_sgpr_kernarg_segment_ptr 1
  .amdhsa_system_sgpr_workgroup_id_x 1
  .amdhsa_float_denorm_mode_32 3
.end_amdhsa_kernel
'''
        return hdr + '\n'.join(body) + '\n' + kd
```

```python
from common import *

T_THRESH = 48.0

def kern_attn(opts=None):
    opts = opts or {}
    name = opts.get('name', 'attn_kernel')
    k = Kern(name); k.kidx = opts.get('kidx', 0)
    KA = 8; VA = 12; KD = 20; VD = 24; WD = 26; AV = 30
    NEGM = 36
    MX = 52
    FF = 56
    TMP = 60
    S = [64, 128]
    QACC = 64
    aO = 0; aQ = 128; aL = 192; aONE = 208; aFR = 212
    KSLOT = lambda n: (n & 3) * 16384
    VSLOT = lambda n: ((n + 2) & 3) * 16384
    k.e(f's_cmp_ge_u32 s2, 256\ns_cbranch_scc1 L_{name}_end')
    k.e(f's_load_dwordx2 s[4:5], s[0:1], {A_WS}')
    k.e(f's_load_dwordx2 s[6:7], s[0:1], {A_WQ}')
    k.e(f's_load_dwordx2 s[8:9], s[0:1], {A_K}')
    k.e(f's_load_dwordx2 s[10:11], s[0:1], {A_V}')
    PF = opts.get('pf', True)
    if PF:
        k.e(f's_load_dwordx2 s[48:49], s[0:1], {A_WO}')
        k.e(f's_load_dwordx2 s[54:55], s[0:1], {A_WG}')
        k.e(f's_load_dwordx2 s[56:57], s[0:1], {A_WU}')
        k.e(f's_load_dwordx2 s[58:59], s[0:1], {A_WD}')
    k.stamp(0)
    k.e('v_lshrrev_b32 v2, 6, v0')
    k.e('v_and_b32 v1, 63, v0')
    k.e('v_readfirstlane_b32 s32, v2')
    k.e('s_and_b32 s37, s2, 7\ns_lshl_b32 s37, s37, 2\ns_lshr_b32 s38, s2, 6\ns_add_u32 s37, s37, s38')
    k.e('s_lshr_b32 s38, s2, 3\ns_and_b32 s38, s38, 7')
    k.e('s_lshl_b32 s35, s32, 12')
    k.e('v_lshrrev_b32 v4, 4, v1')
    k.e('v_and_b32 v5, 15, v1')
    k.e('v_lshlrev_b32 v3, 4, v1')
    k.e('v_xor_b32 v6, v4, v5\nv_lshlrev_b32 v6, 4, v6\nv_lshl_add_u32 v6, v5, 8, v6')
    for s in range(4): k.e(f'v_xor_b32 v{KA+s}, {s*64}, v6')
    k.e('v_bfe_u32 v6, v1, 2, 2')
    k.e('v_lshl_add_u32 v6, v4, 2, v6')
    k.e('v_and_b32 v7, 7, v6')
    k.e('v_lshlrev_b32 v7, 5, v7\nv_lshl_add_u32 v7, v6, 8, v7')
    k.e('v_and_b32 v6, 3, v1\nv_lshl_add_u32 v7, v6, 3, v7')
    k.e('v_add_u32 v7, 0x8000, v7')
    for db in range(8): k.e(f'v_xor_b32 v{VA+db}, {db*32}, v7')
    for n in range(4):
        k.e(f'v_add_u32 v6, {4*n}, v4')
        k.e('v_xor_b32 v7, v5, v6\nv_lshlrev_b32 v7, 4, v7')
        k.e(f'v_lshl_add_u32 v{KD+n}, v4, 8, v7')
    for n in range(2):
        k.e(f'v_add_u32 v6, {4*n}, v4')
        k.e('v_lshrrev_b32 v7, 1, v5\nv_xor_b32 v7, v7, v6\nv_lshlrev_b32 v7, 5, v7')
        k.e('v_and_b32 v6, 1, v5\nv_lshl_add_u32 v7, v6, 4, v7')
        k.e(f'v_lshl_add_u32 v{VD+n}, v4, 8, v7')
    for n in range(4):
        k.e(f'v_lshlrev_b32 v6, 8, v4\nv_sub_u32 v7, v{VD+(n&1)}, v6')
        k.e(f'v_add_u32 v6, {4*n}, v4\nv_lshl_add_u32 v7, v6, 13, v7')
        k.e(f'v_subrev_u32 v{WD+n}, {1024*n}, v7')
    k.e(f'v_mov_b32 v{AV}, v3')
    for i in range(1, 4): k.e(f'v_add_u32 v{AV+i}, {i*32768}, v3')
    k.e('s_lshl_b32 s33, s38, 4\ns_lshl_b32 s39, s32, 2\ns_add_u32 s33, s33, s39\ns_lshl_b32 s33, s33, 15')
    k.e('s_lshl_b32 s34, s32, 17\ns_lshl_b32 s39, s37, 8\ns_add_u32 s34, s34, s39')
    k.e('s_waitcnt lgkmcnt(0)')
    srd(k, 12, 4, 5, SZ_ACTV, WS_H1)
    srd(k, 16, 6, 7, 1024*4096*2)
    k.e('s_lshl_b32 s39, s37, 19\ns_add_u32 s39, s39, s35')
    k.e('s_add_u32 s20, s8, s39\ns_addc_u32 s21, s9, 0')
    k.e('s_sub_u32 s22, 0x80000, s35\ns_mov_b32 s23, 0x20000')
    k.e('s_add_u32 s24, s10, s39\ns_addc_u32 s25, s11, 0')
    k.e('s_mov_b32 s26, s22\ns_mov_b32 s27, 0x20000')
    srd(k, 28, 4, 5, 2048*4096*2, WS_O)
    if PF:
        k.e('s_mov_b32 s50, 0x800000\ns_mov_b32 s51, 0x20000')
        k.e('s_lshl_b32 s60, s2, 2\ns_add_u32 s60, s60, s32\ns_lshl_b32 s60, s60, 10\ns_mov_b32 s52, s60\ns_mov_b32 s53, 0')
    k.e(f's_mov_b32 s46, {f32(T_THRESH)}')
    k.e('s_mov_b32 s45, 0')
    KVF = opts.get('kvflag', '')
    vm = Counter()
    def emit(lst):
        for txt, tag in lst:
            k.e(txt)
            if tag: vm.issue(tag)
    def dmaK(n, soff):
        out = [(f's_add_u32 m0, s35, {KSLOT(n)}', None)]
        for p in range(4): out.append((f'buffer_load_dwordx4 v{KD+p}, s[20:23], {soff} offen offset:{1024*p} {KVF}lds', ('K', n)))
        return out
    def dmaV(n, soff):
        out = [(f's_add_u32 m0, s35, {65536 + VSLOT(n)}', None)]
        for p in range(4): out.append((f'buffer_load_dwordx4 v{VD+(p&1)}, s[24:27], {soff} offen offset:{1024*p} {KVF}lds', ('V', n)))
        return out
    def dmaW(s):
        out = [(f's_add_u32 m0, s35, {32768 + (s & 3)*16384}', None)]
        for p in range(4):
            if opts.get('noW'): continue
            out.append((f'buffer_load_dwordx4 v{WD+p}, s[16:19], s34 offen offset:{1024*p} lds', ('W', s)))
        out.append((f's_add_u32 s34, s34, {64*8192}', None))
        return out
    def loadH(kk):
        out = []
        for i in range(4):
            b = aO + 16*(kk % 8) + 4*i
            if opts.get('noH'): continue
            if opts.get('Hv'): out.append((f'buffer_load_dwordx4 v[{192+16*(kk%4)+4*i}:{195+16*(kk%4)+4*i}], v{AV+i}, s[12:15], s33 offen', ('H', kk)))
            else: out.append((f'buffer_load_dwordx4 a[{b}:{b+3}], v{AV+i}, s[12:15], s33 offen', ('H', kk)))
        out.append(('s_add_u32 s33, s33, 1024', None))
        return out
    def rdW(gi):
        kk, db = divmod(gi, 8)
        s = kk // 2
        buf = aFR + 4*(gi % 8)
        base = (s & 3)*16384 + (kk & 1)*8192
        return [f'ds_read_b64_tr_b16 a[{buf+2*t}:{buf+2*t+1}], v{VA+db} offset:{base + t*4096}' for t in range(2)]
    HD = opts.get('HD', 6)
    PDW = 4
    for s in range(2): emit(dmaW(s))
    for kk in range(HD): emit(loadH(kk))
    for i in range(128): k.e(f'v_mov_b32 v{QACC+i}, 0')
    k.e(f's_waitcnt vmcnt({vm.count_after(("W", 0)) or 0})')
    k.e('s_barrier')
    k.stamp(1)
    for gi in range(PDW):
        for t in rdW(gi): k.e(t)
    lim = {}
    def qgroup(gi, extra=None):
        NG, NK, NS = lim['NG'], lim['NK'], lim['NS']
        kk, db = divmod(gi, 8); s = kk // 2
        pre = []; fill = []
        w = []
        if db == 0 and vm.count_after(("H", kk)) is not None: w.append(f'vmcnt({vm.count_after(("H", kk))})')
        if gi % 2 == 0:
            nout = max(0, min(gi + PDW, NG) - (gi + 2))
            w.append(f'lgkmcnt({2*nout})')
        if w: pre.append('s_waitcnt ' + ' '.join(w))
        nxt = gi + PDW
        if nxt < NG:
            if nxt % 16 == 0:
                if vm.count_after(("W", nxt // 16)) is not None: fill.append((f's_waitcnt vmcnt({vm.count_after(("W", nxt // 16))})', None))
                fill.append(('s_barrier', None))
            fill += [(t, None) for t in rdW(nxt)]
        if db == 1 and kk + HD < NK: fill += loadH(kk + HD)
        if (kk & 1) == 0 and db == 4 and s + 2 < NS: fill += dmaW(s + 2)
        if extra: fill += extra
        for p in pre: k.e(p)
        buf = aFR + 4*(gi % 8)
        per = (len(fill) + 3) // 4; fi = 0
        for qb in range(4):
            acc = QACC + (db*4 + qb)*4
            hb = aO + 16*(kk % 8) + 4*qb
            k.e(f'v_mfma_f32_16x16x32_bf16 v[{acc}:{acc+3}], a[{buf}:{buf+3}], a[{hb}:{hb+3}], v[{acc}:{acc+3}]')
            for _ in range(per):
                if fi < len(fill):
                    k.e(fill[fi][0])
                    if fill[fi][1]: vm.issue(fill[fi][1])
                    fi += 1
        assert fi == len(fill)
    BIG = 10**9
    lim.update(NG=BIG, NK=BIG, NS=BIG)
    k.e('s_mov_b32 s36, 3')
    def qbody(t):
        for gi in range(64*t, 64*t + 64): qgroup(gi)
    emit_loop(k, f'L_{name}_qloop', qbody)
    k.e(f's_sub_u32 s36, s36, 1\ns_cmp_lg_u32 s36, 0\ns_cbranch_scc1 L_{name}_qloop')
    lim.update(NG=192, NK=24, NS=12)
    k.e('s_mov_b32 s44, 0\ns_mov_b32 s47, 16384')
    extras = {128 + 5: dmaK(0, 's44'), 128 + 13: dmaK(1, 's47'), 128 + 21: dmaV(0, 's44'), 128 + 29: dmaV(1, 's47')}
    for gi in range(128, 192): qgroup(gi, extras.get(gi))
    k.stamp(2)
    for qb in range(4):
        for s in range(4):
            t = TMP
            a0 = QACC + ((2*s)*4 + qb)*4; b0 = QACC + ((2*s+1)*4 + qb)*4
            t = 192 + 4*((qb*4+s) % 8)
            k.e(f'v_cvt_pk_bf16_f32 v{t}, v{a0}, v{a0+1}')
            k.e(f'v_cvt_pk_bf16_f32 v{t+1}, v{a0+2}, v{a0+3}')
            k.e(f'v_cvt_pk_bf16_f32 v{t+2}, v{b0}, v{b0+1}')
            k.e(f'v_cvt_pk_bf16_f32 v{t+3}, v{b0+2}, v{b0+3}')
            k.e('s_nop 1')
            k.e(f'v_permlane32_swap_b32 v{t}, v{t+2}\nv_permlane32_swap_b32 v{t+1}, v{t+3}')
            k.e('s_nop 1')
            k.e(f'v_permlane16_swap_b32 v{t}, v{t+2}\nv_permlane16_swap_b32 v{t+1}, v{t+3}')
            q = aQ + (qb*4 + s)*4
            for u in range(4): k.e(f'v_accvgpr_write_b32 a{q+u}, v{t+u}')
    for db in range(8): k.e(f'v_add_u32 v{VA+db}, 0x8000, v{VA+db}')
    for i in range(128): k.e(f'v_accvgpr_write_b32 a{aO+i}, 0')
    for i in range(16): k.e(f'v_accvgpr_write_b32 a{aL+i}, 0')
    k.e('v_mov_b32 v2, 0x3f803f80')
    for i in range(4): k.e(f'v_accvgpr_write_b32 a{aONE+i}, v2')
    k.e('s_waitcnt vmcnt(0)')
    k.e('s_barrier')
    vm.q = []
    k.stamp(3)
    k.e('s_mov_b32 s47, 32768')
    emit(dmaK(2, 's47'))
    def rdK(n, f):
        kb, s = divmod(f, 4)
        buf = aFR + 4*(f % 8)
        return [f'ds_read_b128 a[{buf}:{buf+3}], v{KA+s} offset:{KSLOT(n) + kb*4096}']
    def rdV(n, f):
        ks2, db = divmod(f, 8)
        buf = aFR + 4*(f % 8)
        return [f'ds_read_b64_tr_b16 a[{buf+2*t}:{buf+2*t+1}], v{VA+db} offset:{VSLOT(n) + (32*ks2 + 16*t)*256}' for t in range(2)]
    def Sreg(n, kb, qb):
        return S[n & 1] + (qb*2 + (kb >> 1))*8 + (kb & 1)*4
    def qk_mfma(n, f, qb, czero=False):
        kb, s = divmod(f, 4)
        d = Sreg(n, kb, qb); buf = aFR + 4*(f % 8); q = aQ + (qb*4 + s)*4
        if s == 0: c = '0' if czero else f'v[{NEGM+4*qb}:{NEGM+4*qb+3}]'
        else: c = f'v[{d}:{d+3}]'
        return f'v_mfma_f32_16x16x32_bf16 v[{d}:{d+3}], a[{buf}:{buf+3}], a[{q}:{q+3}], {c}'
    def pv_mfma(n, f, qb):
        ks2, db = divmod(f, 8)
        o = aO + (db*4 + qb)*4; buf = aFR + 4*(f % 8); p = S[n & 1] + (qb*2 + ks2)*8
        return f'v_mfma_f32_16x16x32_bf16 a[{o}:{o+3}], a[{buf}:{buf+3}], v[{p}:{p+3}], a[{o}:{o+3}]'
    def sum_mfma(n, ks2, qb):
        l = aL + 4*qb; p = S[n & 1] + (qb*2 + ks2)*8
        return f'v_mfma_f32_16x16x32_bf16 a[{l}:{l+3}], a[{aONE}:{aONE+3}], v[{p}:{p+3}], a[{l}:{l+3}]'
    def max_ops(n, qb):
        vals = [Sreg(n, kb, qb) + r for kb in range(4) for r in range(4)]
        m = MX + qb
        ops = [f'v_max3_f32 v{m}, v{vals[0]}, v{vals[1]}, v{vals[2]}']
        for i in range(1, 7): ops.append(f'v_max3_f32 v{m}, v{m}, v{vals[2*i+1]}, v{vals[2*i+2]}')
        ops.append(f'v_max_f32 v{m}, v{m}, v{vals[15]}')
        return ops
    def M1(n):
        per = [max_ops(n, qb)[:5] for qb in range(4)]
        return [(1, per[qb][i]) for i in range(5) for qb in range(4)]
    def M2(n):
        per = [max_ops(n, qb)[5:] for qb in range(4)]
        return [(1, per[qb][i]) for i in range(3) for qb in range(4)]
    def EC(n, ks2, qb):
        b = S[n & 1] + (qb*2 + ks2)*8
        e = lambda r: (2, f'v_exp_f32 v{b+r}, v{b+r}')
        c = lambda u: (1, f'v_cvt_pk_bf16_f32 v{b+u}, v{b+2*u}, v{b+2*u+1}')
        return [e(0), e(1), e(2), c(0), e(3), e(4), c(1), e(5), e(6), c(2), e(7), (0, None), c(3)]
    def ec_list(n, ks2):
        out = []
        pend = None
        for qb in range(4):
            u = EC(n, ks2, qb)
            head = u[:11]; last = u[12]
            if pend is not None:
                out.append(head[0]); out.append(pend); out += head[1:]
            else: out += head
            pend = last
        out.append(pend)
        return out
    rare_sites = []
    def check(n, tag):
        lab = f'L_{name}_rare_{tag}'; back = f'L_{name}_back_{tag}'
        rare_sites.append((n, lab, back))
        return [(1, f'v_max3_f32 v{TMP}, v{MX}, v{MX+1}, v{MX+2}'),
                (1, f'v_max_f32 v{TMP}, v{TMP}, v{MX+3}'),
                (1, f'v_cmp_lt_f32 vcc, s46, v{TMP}'),
                (1, f's_cbranch_vccnz {lab}\n{back}:')]
    resc_sites = []
    def pend_check(tag):
        lab = f'L_{name}_resc_{tag}'; back = f'L_{name}_rback_{tag}'
        resc_sites.append((lab, back))
        return [('s_cmp_lg_u32 s45, 0', None), (f's_cbranch_scc1 {lab}\n{back}:', None)]

    def run_phase(groups, flex):
        caps = []
        for g in groups:
            fx = list(g['fixed'])
            per = [[] for _ in range(4)]
            gaps = g.get('order', [0, 1, 2, 3])
            for i, it in enumerate(fx): per[min(3, i * 4 // max(4, len(fx))) if len(fx) > 4 else i % 4].append(it)
            g['per'] = per
            for q in range(4):
                used = sum(0 if t[0].endswith(':') else 1 for t in per[q]) + (len(g['pre']) if q == 3 and False else 0)
                caps.append(max(0, 2 - used - (1 if (q == 3 and g.get('nextpre')) else 0)))
        tot = sum(c for c, _ in flex); C = sum(caps)
        ratio = tot / C if C else 0
        cum = 0; used = 0; fi = 0; gi = 0
        for g in groups:
            for p in g['pre']: k.e(p)
            for q in range(4):
                k.e(g['mf'][q])
                for txt, tag in g['per'][q]:
                    k.e(txt)
                    if tag: vm.issue(tag)
                cum += caps[gi] * ratio; gi += 1
                while fi < len(flex) and used + flex[fi][0] * 0.5 <= cum + 1e-9:
                    if flex[fi][1]: k.e(flex[fi][1])
                    used += flex[fi][0]; fi += 1
        while fi < len(flex):
            if flex[fi][1]: k.e(flex[fi][1])
            fi += 1

    PD = 4
    def seq_reads(j, has_x_next, last):
        pass
    def iteration(j, nt_last=None, tag=''):
        hasX = (nt_last is None or j + 1 <= nt_last)
        hasNextX = (nt_last is None or j + 2 <= nt_last)
        if hasX:
            groups = []
            for f in range(16):
                pre = []; fixed = []
                if f % 2 == 0:
                    n_out = 0
                    for ff in (f + 2, f + 3):
                        n_out += 1 if ff < 16 else 2
                    pre.append(f's_waitcnt lgkmcnt({n_out})')
                nx = f + PD
                if nx < 16: fixed += [(t, None) for t in rdK(j + 1, nx)]
                else: fixed += [(t, None) for t in rdV(j, nx - 16)]
                if f == 1: fixed += pend_check(tag + f'_{j & 3}')
                if f == 2 and (nt_last is None or j + 3 <= nt_last): fixed += dmaK(j + 3, 's44')
                if f == 5 and (nt_last is None or j + 2 <= nt_last): fixed += dmaV(j + 2, 's47')
                if f == 7 and PF and (nt_last is None or j + 1 <= nt_last):
                    fixed += [('buffer_load_dwordx4 v[192:195], v3, s[48:51], s52 offen', ('P', j)), ('s_add_u32 s52, s52, 0x100000', None)]
                if f == 8: fixed += [('s_add_u32 s44, s44, 16384', None)]
                if f == 9: fixed += [('s_add_u32 s47, s47, 16384', None)]
                groups.append(dict(mf=[qk_mfma(j + 1, f, qb) for qb in range(4)], pre=pre, fixed=fixed))
            for i in range(15): groups[i]['nextpre'] = bool(groups[i+1]['pre'])
            run_phase(groups[:12], ec_list(j, 1))
            run_phase(groups[12:], M1(j + 1))
        else:
            for c, t in ec_list(j, 1):
                if t: k.e(t)
            for t_ in pend_check(tag + f'_{j & 3}'): k.e(t_[0])
            for nx in range(PD):
                for t in rdV(j, nx): k.e(t)
        groups = []
        for ks2 in range(2):
            groups.append(dict(mf=[sum_mfma(j, ks2, qb) for qb in range(4)], pre=[], fixed=[]))
            for db in range(8):
                f = ks2*8 + db
                pre = []; fixed = []
                if f % 2 == 0:
                    n_out = 0
                    for ff in (f + 2, f + 3):
                        if ff < 16: n_out += 2
                        elif hasNextX: n_out += 1
                    pre.append(f's_waitcnt lgkmcnt({n_out})')
                nx = f + PD
                if nx < 16: fixed += [(t, None) for t in rdV(j, nx)]
                elif hasNextX:
                    if nx == 16:
                        cnts = [c for c in (vm.count_after(('K', j + 2)), vm.count_after(('V', j + 1))) if c is not None]
                        fixed += [(f's_waitcnt vmcnt({min(cnts)})', None), ('s_barrier', None)]
                    fixed += [(t, None) for t in rdK(j + 2, nx - 16)]
                elif nx == 16 and hasX:
                    cnts = [c for c in (vm.count_after(('V', j + 1)),) if c is not None]
                    fixed += [(f's_waitcnt vmcnt({min(cnts)})', None), ('s_barrier', None)]
                groups.append(dict(mf=[pv_mfma(j, f, qb) for qb in range(4)], pre=pre, fixed=fixed))
        for i in range(17): groups[i]['nextpre'] = bool(groups[i+1]['pre'])
        if hasX:
            run_phase(groups[:3], [(0, None)] + M2(j + 1) + check(j + 1, tag + f'_{j & 3}'))
            run_phase(groups[3:], ec_list(j + 1, 0))
        else:
            run_phase(groups, [])

    k.e(f's_waitcnt vmcnt(4)')
    for f in range(PD):
        for t in rdK(0, f): k.e(t)
    groups = []
    for f in range(16):
        pre = []; fixed = []
        if f % 2 == 0:
            n_out = sum(1 for ff in (f + 2, f + 3) if ff < 16)
            pre.append(f's_waitcnt lgkmcnt({n_out})')
        nx = f + PD
        if nx < 16: fixed += [(t, None) for t in rdK(0, nx)]
        groups.append(dict(mf=[qk_mfma(0, f, qb, czero=True) for qb in range(4)], pre=pre, fixed=fixed))
    run_phase(groups, [])
    for f in range(PD):
        for t in rdK(1, f): k.e(t)
    k.e('s_nop 7')
    for qb in range(4):
        for t in max_ops(0, qb): k.e(t)
    for qb in range(4):
        xor16_sum(k, MX + qb, TMP, 'v_max_f32'); xor32_sum(k, MX + qb, TMP, 'v_max_f32')
    for qb in range(4):
        for r in range(4): k.e(f'v_sub_f32 v{NEGM+4*qb+r}, 0, v{MX+qb}')
        for kb in range(4):
            for r in range(4):
                x = Sreg(0, kb, qb) + r
                k.e(f'v_sub_f32 v{x}, v{x}, v{MX+qb}')
    for c, t in ec_list(0, 0):
        if t: k.e(t)
    k.e('s_mov_b32 s44, 49152\ns_mov_b32 s47, 32768')
    k.e('s_waitcnt lgkmcnt(0)') if Kern.stamps else None
    k.stamp(4)
    k.e('s_mov_b32 s36, 7')
    def abody(t):
        nr, ns = len(rare_sites), len(resc_sites)
        for j in range(4*t, 4*t + 4): iteration(j, None, 'a')
        if t > 0:
            del rare_sites[nr:]; del resc_sites[ns:]
    emit_loop(k, f'L_{name}_loop', abody)
    if PF:
        k.e('s_add_u32 s53, s53, 1')
        for idx, sp in ((2, 54), (4, 56), (6, 58)):
            k.e(f's_cmp_eq_u32 s53, {idx}\ns_cselect_b32 s48, s{sp}, s48\ns_cselect_b32 s49, s{sp+1}, s49')
        k.e('s_cmp_ge_u32 s53, 2\ns_cselect_b32 s50, 0x700000, s50')
        k.e('s_bitcmp1_b32 s53, 0\ns_cselect_b32 s52, s52, s60')
    k.e(f's_sub_u32 s36, s36, 1\ns_cmp_lg_u32 s36, 0\ns_cbranch_scc1 L_{name}_loop')
    for j in range(8, 12): iteration(j, 11, 'c')
    k.stamp(5)
    k.e('s_nop 7')
    for qb in range(4):
        k.e(f'v_accvgpr_read_b32 v{MX+qb}, a{aL+4*qb}')
    k.e('s_nop 0')
    for qb in range(4): k.e(f'v_rcp_f32 v{MX+qb}, v{MX+qb}')
    k.e('s_lshl_b32 s39, s38, 4\ns_lshl_b32 s40, s32, 2\ns_add_u32 s39, s39, s40\ns_lshl_b32 s39, s39, 17\ns_lshl_b32 s40, s37, 12\ns_add_u32 s39, s39, s40')
    cnt = 0
    for qb in range(4):
        for s in range(4):
            t = 64 + 16*(cnt % 4); cnt += 1
            for h in range(2):
                o = aO + ((2*s + h)*4 + qb)*4
                for r in range(4): k.e(f'v_accvgpr_read_b32 v{t+4*h+r}, a{o+r}')
            for i in range(8): k.e(f'v_mul_f32 v{t+i}, v{t+i}, v{MX+qb}')
            for u in range(4): k.e(f'v_cvt_pk_bf16_f32 v{t+8+u}, v{t+2*u}, v{t+2*u+1}')
            k.e(f'buffer_store_dwordx4 v[{t+8}:{t+11}], v3, s[28:31], s39 offen offset:{s*1024}')
        k.e('s_add_u32 s39, s39, 0x20000')
    if Kern.stamps:
        k.stamp(6); k.e('s_waitcnt vmcnt(0)'); k.stamp(7); k.flush_stamps(32)
    k.e('s_endpgm')
    for (n, lab, back) in rare_sites:
        k.label(lab)
        for qb in range(4):
            xor16_sum(k, MX + qb, TMP, 'v_max_f32'); xor32_sum(k, MX + qb, TMP, 'v_max_f32')
        for qb in range(4):
            k.e(f'v_max_f32 v{MX+qb}, 0, v{MX+qb}')
            k.e(f'v_sub_f32 v{TMP}, 0, v{MX+qb}')
            k.e(f'v_exp_f32 v{FF+qb}, v{TMP}')
            for r in range(4): k.e(f'v_sub_f32 v{NEGM+4*qb+r}, v{NEGM+4*qb+r}, v{MX+qb}')
            for kb in range(4):
                for r in range(4):
                    x = Sreg(n, kb, qb) + r
                    k.e(f'v_sub_f32 v{x}, v{x}, v{MX+qb}')
        k.e('s_mov_b32 s45, 1')
        k.e('s_nop 1')
        k.e(f's_branch {back}')
    for (lab, back) in resc_sites:
        k.label(lab)
        k.e('s_nop 7\ns_nop 7')
        for qb in range(4):
            regs_ = [aO + (db*4 + qb)*4 + r for db in range(8) for r in range(4)] + [aL + 4*qb + r for r in range(4)]
            for i in range(0, len(regs_), 4):
                for u in range(4): k.e(f'v_accvgpr_read_b32 v{TMP+u}, a{regs_[i+u]}')
                for u in range(4): k.e(f'v_mul_f32 v{TMP+u}, v{TMP+u}, v{FF+qb}')
                for u in range(4): k.e(f'v_accvgpr_write_b32 a{regs_[i+u]}, v{TMP+u}')
        k.e('s_mov_b32 s45, 0')
        k.e('s_nop 1')
        k.e(f's_branch {back}')
    k.label(f'L_{name}_end')
    k.e('s_endpgm')
    return k.finish(vgpr=256, agpr=256, sgpr=64)
```

```python
from common import *

def kern_gateup(opts=None):
    opts = opts or {}
    name = opts.get('name', 'gateup_kernel')
    k = Kern(name); k.kidx = opts.get('kidx', 0)
    STG = 28672; REG = 14336
    AV = 8
    WV = 12
    TR = 20
    WF = 24
    ACT = 40
    k.e(f's_cmp_ge_u32 s2, 256\ns_cbranch_scc1 L_{name}_end')
    k.e(f's_load_dwordx2 s[4:5], s[0:1], {A_WS}')
    k.e(f's_load_dwordx2 s[6:7], s[0:1], {A_WG}')
    k.e(f's_load_dwordx2 s[8:9], s[0:1], {A_WU}')
    k.stamp(0)
    k.e('v_lshrrev_b32 v2, 6, v0')
    k.e('v_and_b32 v1, 63, v0')
    k.e('v_readfirstlane_b32 s32, v2')
    k.e('s_and_b32 s37, s2, 7\ns_lshr_b32 s38, s2, 3')
    k.e('s_lshl_b32 s40, s37, 2\ns_and_b32 s41, s38, 3\ns_add_u32 s40, s40, s41')
    k.e('s_lshr_b32 s39, s38, 2')
    k.e('v_lshlrev_b32 v3, 4, v1')
    k.e(f'v_mov_b32 v{AV}, v3')
    for i in range(1, 4): k.e(f'v_add_u32 v{AV+i}, {i*32768}, v3')
    k.e('s_lshl_b32 s33, s39, 4\ns_lshl_b32 s42, s32, 2\ns_add_u32 s33, s33, s42\ns_lshl_b32 s33, s33, 15')
    for n in range(7):
        k.e(f'v_add_u32 v4, {64*n}, v1')
        k.e('v_mul_u32_u24 v5, 4682, v4\nv_lshrrev_b32 v5, 16, v5')
        k.e('v_mul_u32_u24 v6, 14, v5\nv_sub_u32 v6, v4, v6')
        k.e('v_mul_u32_u24 v5, 7168, v5\nv_lshl_add_u32 v5, v6, 4, v5')
        k.e(f'v_subrev_u32 v{WV+n}, {1024*(n&3)}, v5')
    k.e('s_and_b32 s42, s32, 1\ns_mul_i32 s34, s42, 229376\ns_mul_i32 s43, s40, 224\ns_add_u32 s34, s34, s43')
    k.e(f's_lshr_b32 s43, s32, 1\ns_mul_i32 s35, s43, {REG}\ns_mul_i32 s42, s42, 7168\ns_add_u32 s35, s35, s42')
    k.e('v_lshrrev_b32 v4, 4, v1\nv_bfe_u32 v5, v1, 2, 2\nv_lshl_add_u32 v5, v4, 2, v5')
    k.e('v_mul_u32_u24 v5, 224, v5\nv_and_b32 v6, 3, v1')
    k.e(f'v_lshl_add_u32 v{TR}, v6, 3, v5')
    k.e(f'v_add_u32 v{TR+1}, {2*STG}, v{TR}')
    k.e('s_waitcnt lgkmcnt(0)')
    srd(k, 12, 4, 5, SZ_ACTV, WS_H2)
    k.e('s_cmp_lt_u32 s32, 2')
    k.e('s_cselect_b32 s16, s6, s8\ns_cselect_b32 s17, s7, s9')
    k.e(f's_mov_b32 s18, {1024*3584*2}\ns_mov_b32 s19, 0x20000')
    srd(k, 20, 4, 5, 2048*3584*2, WS_ACT)
    for i in range(224): k.e(f'v_accvgpr_write_b32 a{i}, 0')
    vm = Counter()
    def dma(s):
        slot = s % 4
        out = []
        for n in range(7):
            if n % 4 == 0:
                out.append((f's_add_u32 s43, s35, {slot*STG + 4096*(n//4)}', None))
                out.append(('s_mov_b32 m0, s43', None))
            if opts.get('noW'): continue
            out.append((f'buffer_load_dwordx4 v{WV+n}, s[16:19], s34 offen offset:{1024*(n&3)} lds', ('W', s)))
        out.append((f's_add_u32 s34, s34, {64*7168}', None))
        return out
    def actl(kk):
        out = []
        for i in range(4):
            b = ACT + 16*(kk % 4) + 4*i
            if opts.get('noA'): continue
            out.append((f'buffer_load_dwordx4 v[{b}:{b+3}], v{AV+i}, s[12:15], s33 offen', ('A', kk)))
        out.append(('s_add_u32 s33, s33, 1024', None))
        return out
    def rd(gi):
        kk, j = divmod(gi, 14)
        s = kk // 2; slot = s % 4
        b = j // 2; reg = j & 1
        buf = WF + 4*(gi % 4)
        base = (slot & 1) * STG + reg * REG + (kk & 1) * 7168 + b * 32
        a = TR + (slot >> 1)
        return [f'ds_read_b64_tr_b16 v[{buf+2*t}:{buf+2*t+1}], v{a} offset:{base + t*3584}' for t in range(2)]
    for s in range(2):
        for txt, tag in dma(s):
            k.e(txt)
            if tag: vm.issue(tag)
    for kk in range(3):
        for txt, tag in actl(kk):
            k.e(txt)
            if tag: vm.issue(tag)
    k.e(f's_waitcnt vmcnt({vm.count_after(("W", 0)) or 0})')
    k.e('s_barrier')
    k.stamp(1)
    for gi in range(3):
        for t in rd(gi): k.e(t)
    NG = 16 * 28
    def group(gi, last_trip):
        kk, j = divmod(gi, 14)
        s = kk // 2
        fill = []
        pre = []
        if j == 0:
            ca = vm.count_after(("A", kk))
            pre.append(f's_waitcnt vmcnt({ca}) lgkmcnt(4)' if ca is not None else 's_waitcnt lgkmcnt(4)')
        else:
            rem = min(3, NGT - gi) - 1
            pre.append(f's_waitcnt lgkmcnt({2*rem})')
        nxt = gi + 3
        if nxt < NGT:
            if nxt % 28 == 0:
                if vm.count_after(("W", nxt // 28)) is not None: fill.append((f's_waitcnt vmcnt({vm.count_after(("W", nxt // 28))})', None))
                fill.append(('s_barrier', None))
            fill += [(t, None) for t in rd(nxt)]
        extra = []
        if j == 1 and kk + 3 < NKT: extra += actl(kk + 3)
        if (kk & 1) == 0 and s + 2 < NST:
            dl = dma(s + 2); cut = 2 if opts.get('noW') else 6
            if j == 4: extra += dl[:cut]
            if j == 8: extra += dl[cut:]
        fill += extra
        for p in pre: k.e(p)
        b = j // 2; reg = j & 1
        buf = WF + 4*(gi % 4)
        fi = 0
        per = (len(fill) + 3) // 4
        for i in range(4):
            acc = ((reg * 7 + b) * 4 + i) * 4
            ab = ACT + 16*(kk % 4) + 4*i
            k.e(f'v_mfma_f32_16x16x32_bf16 a[{acc}:{acc+3}], v[{buf}:{buf+3}], v[{ab}:{ab+3}], a[{acc}:{acc+3}]')
            for _ in range(per):
                if fi < len(fill):
                    k.e(fill[fi][0])
                    if fill[fi][1]: vm.issue(fill[fi][1])
                    fi += 1
        assert fi == len(fill)
    BIG = 10**9
    NGT = BIG; NKT = BIG; NST = BIG
    k.e('s_mov_b32 s36, 3')
    def gbody(t):
        for gi in range(112*t, 112*t + 112): group(gi, False)
    emit_loop(k, f'L_{name}_loop', gbody)
    k.e('s_sub_u32 s36, s36, 1\ns_cmp_lg_u32 s36, 0')
    k.e(f's_cbranch_scc1 L_{name}_loop')
    NGT = 336; NKT = 24; NST = 12
    for gi in range(224, 336): group(gi, True)
    k.stamp(2)
    k.e(f's_lshl_b32 s33, s39, 4\ns_lshl_b32 s42, s32, 2\ns_add_u32 s33, s33, s42\ns_mul_i32 s33, s33, {112*1024}')
    k.e('s_mul_i32 s41, s40, 7')
    for b in range(7):
        k.e(f's_add_u32 s42, s41, {b}\ns_lshr_b32 s43, s42, 1\ns_lshl_b32 s43, s43, 10\ns_and_b32 s42, s42, 1\ns_lshl_b32 s42, s42, 3\ns_add_u32 s43, s43, s42\ns_add_u32 s{44+b}, s43, s33')
    k.e(f'v_mov_b32 v{AV}, v3')
    for i in range(1, 4): k.e(f'v_add_u32 v{AV+i}, {i*112*1024}, v3')
    k.e(f's_mov_b32 s52, {f32(-1.4426950408889634)}')
    T = ACT
    cnt = 0
    for b in range(7):
        for i in range(4):
            g = ((0 * 7 + b) * 4 + i) * 4; u = ((1 * 7 + b) * 4 + i) * 4
            t = T + 16 * (cnt % 4); cnt += 1
            for r in range(4): k.e(f'v_accvgpr_read_b32 v{t+r}, a{g+r}')
            for r in range(4): k.e(f'v_accvgpr_read_b32 v{t+4+r}, a{u+r}')
            for r in range(4): k.e(f'v_mul_f32 v{t+8+r}, s52, v{t+r}')
            for r in range(4): k.e(f'v_exp_f32 v{t+8+r}, v{t+8+r}')
            for r in range(4): k.e(f'v_mul_f32 v{t+r}, v{t+r}, v{t+4+r}')
            for r in range(4): k.e(f'v_add_f32 v{t+8+r}, 1.0, v{t+8+r}')
            for r in range(4): k.e(f'v_rcp_f32 v{t+8+r}, v{t+8+r}')
            k.e('s_nop 0')
            for r in range(4): k.e(f'v_mul_f32 v{t+r}, v{t+r}, v{t+8+r}')
            k.e(f'v_cvt_pk_bf16_f32 v{t+12}, v{t}, v{t+1}')
            k.e(f'v_cvt_pk_bf16_f32 v{t+13}, v{t+2}, v{t+3}')
            k.e(f'buffer_store_dwordx2 v[{t+12}:{t+13}], v{AV+i}, s[20:23], s{44+b} offen')
    if Kern.stamps:
        k.stamp(3); k.e('s_waitcnt vmcnt(0)'); k.stamp(4); k.flush_stamps(32)
    k.label(f'L_{name}_end')
    k.e('s_endpgm')
    return k.finish(vgpr=104, agpr=224, sgpr=56)
```

```python
from common import *
from k_prep2 import MODP, MODSZ, bf16_round

def kern_gemm1024(which, opts=None, suffix=''):
    opts = opts or {}
    name = f'{which}{suffix}_kernel'
    k = Kern(name); k.kidx = opts.get('kidx', 0)
    if which == 'wo':
        KD, act_off, wptr, gidx = 4096, WS_O, A_WO, 2
    else:
        KD, act_off, wptr, gidx = 3584, WS_ACT, A_WD, 5
    nks = KD // 32
    nst = nks // 4
    D = 3; NB = 4
    AV = 8; WV = 16; TR = 20; WF = 24; ACT = 64; XR = 192; GV = 208
    k.e(f's_cmp_ge_u32 s2, 256\ns_cbranch_scc1 L_{name}_end')
    k.e(f's_load_dwordx2 s[4:5], s[0:1], {A_WS}')
    k.e(f's_load_dwordx2 s[6:7], s[0:1], {wptr}')
    k.e(f's_load_dwordx2 s[8:9], s[0:1], {A_X if which == "wo" else A_OUT}')
    k.stamp(0)
    k.e('v_lshrrev_b32 v2, 6, v0')
    k.e('v_and_b32 v1, 63, v0')
    k.e('v_readfirstlane_b32 s32, v2')
    k.e('s_and_b32 s37, s2, 7')
    k.e('s_lshr_b32 s38, s2, 3')
    k.e('s_lshr_b32 s39, s37, 1\ns_lshl_b32 s39, s39, 2\ns_lshr_b32 s40, s38, 3\ns_add_u32 s39, s39, s40')
    k.e('s_and_b32 s40, s37, 1\ns_lshl_b32 s40, s40, 3\ns_and_b32 s41, s38, 7\ns_add_u32 s40, s40, s41')
    k.e('v_lshlrev_b32 v3, 4, v1')
    k.e('s_lshl_b32 s41, s32, 1')
    for i in range(8):
        k.e(f's_add_u32 s42, s41, {i}\ns_and_b32 s42, s42, 7\ns_mul_i32 s42, s42, {nks*1024}')
        k.e(f'v_add_u32 v{AV+i}, s42, v3')
    k.e(f's_mul_i32 s33, s39, {8*nks*1024}\ns_mul_i32 s42, s32, {nst*1024}\ns_add_u32 s33, s33, s42')
    k.e('v_lshrrev_b32 v4, 3, v1')
    k.e('v_bfe_u32 v5, v1, 1, 2')
    k.e('v_bfe_u32 v6, v1, 4, 2')
    k.e('v_xor_b32 v5, v5, v6')
    k.e('v_lshlrev_b32 v5, 5, v5')
    k.e('v_and_b32 v6, 1, v1')
    k.e('v_lshl_add_u32 v5, v6, 4, v5')
    k.e(f'v_lshl_add_u32 v{WV}, v4, 11, v5')
    for q in range(1, 4): k.e(f'v_add_u32 v{WV+q}, {15360*q}, v{WV}')
    k.e(f's_mul_i32 s34, s32, {nst*65536}\ns_lshl_b32 s42, s40, 7\ns_add_u32 s34, s34, s42')
    k.e('v_lshrrev_b32 v4, 4, v1')
    k.e('v_bfe_u32 v5, v1, 2, 2')
    k.e('v_lshl_add_u32 v6, v4, 2, v5')
    k.e('v_lshlrev_b32 v7, 7, v6')
    k.e('v_bfe_u32 v6, v6, 1, 2')
    k.e('v_lshl_add_u32 v7, v6, 5, v7')
    k.e('v_and_b32 v6, 3, v1')
    k.e('v_lshl_add_u32 v7, v6, 3, v7')
    k.e('s_lshl_b32 s35, s32, 14')
    k.e(f'v_add_u32 v{TR}, s35, v7')
    for nb in range(1, 4): k.e(f'v_xor_b32 v{TR+nb}, {nb*32}, v{TR}')
    k.e('s_waitcnt lgkmcnt(0)')
    srd(k, 12, 4, 5, 2048*KD*2, act_off)
    srd(k, 16, 6, 7, KD*2048)
    srd(k, 20, 4, 5, MODSZ, WS_MOD)
    if which == 'wo':
        srd(k, 24, 8, 9, SZ_ACTV)
        srd(k, 28, 4, 5, SZ_ACTV, WS_X1)
    else:
        srd(k, 24, 4, 5, SZ_ACTV, WS_X1)
        srd(k, 28, 8, 9, SZ_ACTV)
    vm = Counter()
    k.e('v_lshlrev_b32 v5, 4, v4')
    k.e(f's_lshl_b32 s42, s40, 8\ns_add_u32 s42, s42, {gidx*4096}')
    for nb in range(4):
        k.e(f'buffer_load_dwordx4 v[{GV+4*nb}:{GV+4*nb+3}], v5, s[20:23], s42 offen offset:{nb*64}'); vm.issue('epi')
    k.e(f's_add_u32 s42, s42, {MODP}')
    for nb in range(4):
        k.e(f'buffer_load_dwordx4 v[{GV+16+4*nb}:{GV+16+4*nb+3}], v5, s[20:23], s42 offen offset:{nb*64}'); vm.issue('epi')
    k.e('v_and_b32 v6, 15, v1')
    if which == 'wo':
        k.e('v_lshlrev_b32 v56, 11, v6\nv_lshl_add_u32 v56, v4, 3, v56')
        k.e('s_lshl_b32 s42, s39, 18\ns_lshl_b32 s43, s32, 16\ns_add_u32 s42, s42, s43\ns_lshl_b32 s43, s40, 7\ns_add_u32 s42, s42, s43')
        for i in range(2):
            for nb in range(4):
                k.e(f'buffer_load_dwordx2 v[{XR+8*i+2*nb}:{XR+8*i+2*nb+1}], v56, s[24:27], s42 offen offset:{nb*32}'); vm.issue('epi')
            if i == 0: k.e('s_add_u32 s42, s42, 0x8000')
    else:
        k.e('s_lshl_b32 s42, s39, 18\ns_lshl_b32 s43, s32, 16\ns_add_u32 s42, s42, s43\ns_lshl_b32 s43, s40, 11\ns_add_u32 s42, s42, s43')
        for i in range(2):
            for p in range(2):
                k.e(f'buffer_load_dwordx4 v[{XR+8*i+4*p}:{XR+8*i+4*p+3}], v3, s[24:27], s42 offen offset:{p*1024}'); vm.issue('epi')
            if i == 0: k.e('s_add_u32 s42, s42, 0x8000')
    for i in range(128): k.e(f'v_accvgpr_write_b32 a{i}, 0')

    def loads_list(st):
        slot = st % 4
        out = []
        out.append((f's_add_u32 s43, s35, {slot*4096}', None))
        out.append(('s_mov_b32 m0, s43', None))
        for q in range(4):
            if opts.get('noW'): out.append(('s_nop 0', ('W', st)))
            else: out.append((f'buffer_load_dwordx4 v{WV+q}, s[16:19], s34 offen offset:{q*1024} lds', ('W', st)))
        for i in range(8):
            b = ACT + 32*slot + 4*i
            if opts.get('noA'): out.append(('s_nop 0', ('A', st)))
            else: out.append((f'buffer_load_dwordx4 v[{b}:{b+3}], v{AV+i}, s[12:15], s33 offen', ('A', st)))
        out.append(('s_add_u32 s33, s33, 1024', None))
        out.append(('s_add_u32 s34, s34, 0x10000', None))
        return out
    def trreads(st):
        slot = st % 4; fb = WF + 16 * (st & 1)
        return [f'ds_read_b64_tr_b16 v[{fb+4*nb+2*t}:{fb+4*nb+2*t+1}], v{TR+nb} offset:{slot*4096 + t*2048}' for nb in range(4) for t in range(2)]
    for st in range(D):
        for txt, tag in loads_list(st):
            k.e(txt)
            if tag: vm.issue(tag)
    k.stamp(1)
    k.e(f's_waitcnt vmcnt({vm.count_after(("W", 0))})')
    k.stamp(2)
    for t in trreads(0): k.e(t)

    def step(st, issue_loads, read_next):
        fill = []
        if read_next: n = vm.count_after(('W', st + 1))
        else: n = vm.count_after(('A', st))
        k.e(f's_waitcnt vmcnt({n}) lgkmcnt(0)')
        if read_next: fill += [(t, None) for t in trreads(st + 1)]
        if issue_loads: fill += loads_list(st + D)
        fb = WF + 16 * (st & 1); ab = ACT + 32 * (st % 4)
        fi = 0
        for nb in range(4):
            for i in range(8):
                acc = (i * 4 + nb) * 4
                if not opts.get('noM'): k.e(f'v_mfma_f32_16x16x32_bf16 a[{acc}:{acc+3}], v[{fb+4*nb}:{fb+4*nb+3}], v[{ab+4*i}:{ab+4*i+3}], a[{acc}:{acc+3}]')
                if fi < len(fill):
                    k.e(fill[fi][0])
                    if fill[fi][1]: vm.issue(fill[fi][1])
                    fi += 1
        assert fi == len(fill)
    ntrip = (nst - 4) // 4
    assert nst % 4 == 0
    k.e(f's_mov_b32 s36, {ntrip}')
    def wbody(t):
        for st in range(4*t, 4*t + 4): step(st, True, True)
    emit_loop(k, f'L_{name}_loop', wbody)
    k.e('s_sub_u32 s36, s36, 1\ns_cmp_lg_u32 s36, 0')
    k.e(f's_cbranch_scc1 L_{name}_loop')
    base = 8
    for j in range(4):
        st = base + j
        step(st, issue_loads=(j + D < 4), read_next=(j < 3))
    k.stamp(3)
    k.e('s_barrier')
    for delta in (1, 2, 3):
        k.e(f's_add_u32 s42, s32, {delta}\ns_and_b32 s42, s42, 3\ns_mul_i32 s42, s42, {3*8192}\ns_add_u32 s42, s42, {(delta-1)*8192}')
        k.e(f'v_add_u32 v{56+delta}, s42, v3')
    for delta in (1, 2, 3):
        for ii in range(2):
            for nb in range(4):
                acc = ((2*delta + ii) * 4 + nb) * 4
                k.e(f'ds_write_b128 v{56+delta}, a[{acc}:{acc+3}] offset:{(ii*4+nb)*1024}')
    k.e('s_waitcnt lgkmcnt(0)\ns_barrier')
    k.e(f's_mul_i32 s42, s32, {3*8192}\nv_add_u32 v56, s42, v3')
    for delta in (1, 2, 3):
        for b in range(8):
            r = ACT + (delta-1)*32 + 4*b
            k.e(f'ds_read_b128 v[{r}:{r+3}], v56 offset:{(delta-1)*8192 + b*1024}')
    OWN = ACT + 96
    for i in range(32): k.e(f'v_accvgpr_read_b32 v{OWN+i}, a{i}')
    k.e('s_waitcnt lgkmcnt(0)')
    for i in range(32):
        k.e(f'v_add_f32 v{ACT+i}, v{ACT+i}, v{ACT+32+i}')
        k.e(f'v_add_f32 v{OWN+i}, v{OWN+i}, v{ACT+64+i}')
        k.e(f'v_add_f32 v{OWN+i}, v{OWN+i}, v{ACT+i}')
    k.e('s_waitcnt vmcnt(0)')
    k.stamp(4)
    for i in range(16): k.e(f'v_add_f32 v{GV+i}, v{GV+i}, v{GV+16+i}')
    for i in range(0, 16, 2): bf16_round(k, GV+i, GV+i+1, 56)
    if which == 'wo':
        for ii in range(2):
            for nb in range(4):
                for u in range(2):
                    xr = XR + 8*ii + 2*nb + u
                    o = OWN + (ii*4+nb)*4 + 2*u
                    k.e(f'v_lshlrev_b32 v56, 16, v{xr}')
                    k.e(f'v_and_b32 v57, 0xffff0000, v{xr}')
                    k.e(f'v_fma_f32 v{o}, v{o}, v{GV+4*nb+2*u}, v56')
                    k.e(f'v_fma_f32 v{o+1}, v{o+1}, v{GV+4*nb+2*u+1}, v57')
                    k.e(f'v_cvt_pk_bf16_f32 v{ACT + ii*8 + nb*2 + u}, v{o}, v{o+1}')
        k.e('s_lshl_b32 s42, s39, 18\ns_lshl_b32 s43, s32, 16\ns_add_u32 s42, s42, s43\ns_lshl_b32 s43, s40, 11\ns_add_u32 s42, s42, s43')
        for ii in range(2):
            for p in range(2):
                r = ACT + ii*8 + p*4
                k.e(f'buffer_store_dwordx4 v[{r}:{r+3}], v3, s[28:31], s42 offen offset:{p*1024}')
            if ii == 0: k.e('s_add_u32 s42, s42, 0x8000')
    else:
        for ii in range(2):
            for nb in range(4):
                for u in range(2):
                    xr = XR + 8*ii + 2*nb + u
                    o = OWN + (ii*4+nb)*4 + 2*u
                    k.e(f'v_lshlrev_b32 v56, 16, v{xr}')
                    k.e(f'v_and_b32 v57, 0xffff0000, v{xr}')
                    k.e(f'v_fma_f32 v{o}, v{o}, v{GV+4*nb+2*u}, v56')
                    k.e(f'v_fma_f32 v{o+1}, v{o+1}, v{GV+4*nb+2*u+1}, v57')
                    k.e(f'v_cvt_pk_bf16_f32 v{ACT + ii*8 + nb*2 + u}, v{o}, v{o+1}')
        for ii in range(2):
            for p in range(2):
                r = ACT + ii*8 + p*4
                for u in range(2):
                    k.e(f'v_permlane32_swap_b32 v{r+u}, v{r+2+u}')
                for u in range(2):
                    k.e(f'v_permlane16_swap_b32 v{r+u}, v{r+2+u}')
        k.e('v_lshlrev_b32 v56, 11, v6\nv_lshl_add_u32 v56, v4, 4, v56')
        k.e('s_lshl_b32 s42, s39, 18\ns_lshl_b32 s43, s32, 16\ns_add_u32 s42, s42, s43\ns_lshl_b32 s43, s40, 7\ns_add_u32 s42, s42, s43')
        for ii in range(2):
            for p in range(2):
                r = ACT + ii*8 + p*4
                k.e(f'buffer_store_dwordx4 v[{r}:{r+3}], v56, s[28:31], s42 offen offset:{p*64}')
            if ii == 0: k.e('s_add_u32 s42, s42, 0x8000')
    if Kern.stamps:
        k.e('s_waitcnt vmcnt(0)'); k.stamp(5); k.flush_stamps(32)
    k.label(f'L_{name}_end')
    k.e('s_endpgm')
    return k.finish(vgpr=240, agpr=128, sgpr=48)
```

```python
from common import *

def kern_mod(opts=None):
    opts = opts or {}
    k = Kern('mod_kernel'); k.kidx = opts.get('kidx', 0); k.sv = 2
    k.e('s_cmp_ge_u32 s2, 96\ns_cbranch_scc1 L_mod_end')
    k.e(f's_load_dwordx2 s[4:5], s[0:1], {A_C}')
    k.e(f's_load_dwordx2 s[6:7], s[0:1], {A_WMOD}')
    k.e(f's_load_dwordx2 s[8:9], s[0:1], {A_WS}')
    k.stamp(0)
    k.e('v_and_b32 v1, 7, v0')
    k.e('v_lshrrev_b32 v2, 3, v0')
    k.e('s_lshl_b32 s3, s2, 7')
    k.e('v_mul_u32_u24 v3, 0x3000, v2')
    k.e('v_lshl_add_u32 v3, v1, 4, v3')
    k.e('v_add_u32 v3, s3, v3')
    k.e('v_lshlrev_b32 v4, 1, v0')
    k.e('s_waitcnt lgkmcnt(0)')
    srd(k, 12, 6, 7, 1024*6144*2)
    srd(k, 16, 4, 5, 2048)
    srd(k, 20, 8, 9, 6144*4, WS_MOD)
    k.e('buffer_load_ushort v5, v4, s[16:19], 0 offen')
    for p in range(8):
        k.e(f's_mov_b32 s24, {p*128*12288}')
        k.e(f'buffer_load_dwordx4 v[{16+4*p}:{19+4*p}], v3, s[12:15], s24 offen nt')
    k.e('s_waitcnt vmcnt(8)')
    k.e('v_lshlrev_b32 v5, 16, v5')
    k.e(f'v_mul_f32 v6, {f32(-1.4426950408889634)}, v5')
    k.e('v_exp_f32 v6, v6')
    k.e('v_add_f32 v6, 1.0, v6')
    k.e('v_rcp_f32 v6, v6')
    k.e('v_mul_f32 v6, v5, v6')
    k.e('v_cvt_pk_bf16_f32 v6, v6, v6')
    k.e('v_lshlrev_b32 v6, 16, v6')
    k.e('v_lshlrev_b32 v4, 2, v0')
    k.e('ds_write_b32 v4, v6')
    k.e('s_waitcnt lgkmcnt(0)\ns_barrier')
    k.e('v_lshlrev_b32 v4, 2, v2')
    for p in range(8):
        k.e(f'ds_read_b32 v{48+p}, v4 offset:{p*512}')
    for j in range(8): k.e(f'v_mov_b32 v{56+j}, 0')
    for p in range(8):
        k.e(f's_waitcnt vmcnt({7-p}) lgkmcnt({7-p})')
        for q in range(4):
            w = 16 + 4*p + q
            k.e(f'v_lshlrev_b32 v64, 16, v{w}')
            k.e(f'v_and_b32 v65, 0xffff0000, v{w}')
            k.e(f'v_fmac_f32 v{56+2*q}, v{48+p}, v64')
            k.e(f'v_fmac_f32 v{57+2*q}, v{48+p}, v65')
    for j in range(8): xor8_sum(k, 56+j)
    for j in range(8): xor16_sum(k, 56+j, 64+j)
    for j in range(8): xor32_sum(k, 56+j, 64+j)
    k.e('v_lshrrev_b32 v4, 6, v0')
    k.e('v_lshlrev_b32 v4, 8, v4')
    k.e('v_lshl_add_u32 v4, v1, 5, v4')
    k.e('v_and_b32 v5, 63, v0')
    k.e('v_cmp_gt_u32 vcc, 8, v5')
    k.e('s_and_saveexec_b64 s[26:27], vcc')
    k.e('ds_write_b128 v4, v[56:59] offset:4096')
    k.e('ds_write_b128 v4, v[60:63] offset:4112')
    k.e('s_mov_b64 exec, s[26:27]')
    k.e('s_waitcnt lgkmcnt(0)\ns_barrier')
    k.e('v_cmp_gt_u32 vcc, 64, v0')
    k.e('s_and_saveexec_b64 s[26:27], vcc')
    k.e('s_cbranch_execz L_mod_end')
    k.e('v_lshlrev_b32 v4, 2, v0')
    for w in range(16):
        k.e(f'ds_read_b32 v{16+w}, v4 offset:{4096 + w*256}')
    k.e('s_waitcnt lgkmcnt(0)')
    for w in range(1, 16):
        k.e(f'v_add_f32 v16, v16, v{16+w}')
    k.e('v_cvt_pk_bf16_f32 v16, v16, v16')
    k.e('v_lshlrev_b32 v16, 16, v16')
    k.e('s_lshl_b32 s3, s2, 8')
    k.e('v_add_u32 v4, s3, v4')
    k.e('buffer_store_dword v16, v4, s[20:23], 0 offen')
    if Kern.stamps:
        k.e('s_waitcnt vmcnt(0)'); k.stamp(1); k.e('s_mov_b32 s64, 0'); k.flush_stamps(64)
    k.label('L_mod_end')
    k.e('s_endpgm')
    return k.finish(vgpr=72, agpr=0, sgpr=32)

def kern_ln(which, opts=None):
    opts = opts or {}
    name = f'ln{which}_kernel'
    k = Kern(name); k.kidx = opts.get('kidx', 0); k.sv = 2
    k.e(f's_cmp_ge_u32 s2, 256\ns_cbranch_scc1 L_{name}_end')
    k.e(f's_load_dwordx2 s[4:5], s[0:1], {A_X}')
    k.e(f's_load_dwordx2 s[8:9], s[0:1], {A_WS}')
    k.stamp(0)
    k.e('v_and_b32 v1, 7, v0')
    k.e('v_bfe_u32 v2, v0, 3, 2')
    k.e('v_bfe_u32 v3, v0, 5, 1')
    k.e('v_lshrrev_b32 v4, 6, v0')
    k.e('v_lshl_add_u32 v5, v4, 3, v3')
    k.e('s_lshr_b32 s10, s2, 1')
    k.e('s_lshl_b32 s10, s10, 15')
    k.e('s_and_b32 s11, s2, 1')
    k.e('s_lshl_b32 s11, s11, 7')
    k.e('s_add_u32 s10, s10, s11')
    k.e('v_lshlrev_b32 v6, 10, v5')
    k.e('v_lshl_add_u32 v6, v2, 8, v6')
    k.e('v_lshl_add_u32 v6, v1, 4, v6')
    k.e('v_add_u32 v6, s10, v6')
    if which == 1:
        k.e('s_lshl_b32 s11, s2, 14')
        k.e('v_lshlrev_b32 v7, 11, v1')
        k.e('v_lshl_add_u32 v7, v5, 6, v7')
        k.e('v_lshl_add_u32 v7, v2, 3, v7')
        k.e('v_add_u32 v7, s11, v7')
    k.e('v_lshlrev_b32 v8, 7, v5')
    k.e('v_lshl_add_u32 v8, v2, 4, v8')
    k.e('s_waitcnt lgkmcnt(0)')
    srd(k, 12, 8, 9, 6144*4, WS_MOD)
    if which == 1:
        srd(k, 16, 4, 5, SZ_ACTV)
        srd(k, 20, 8, 9, SZ_ACTV, WS_H1)
    else:
        srd(k, 16, 8, 9, SZ_ACTV, WS_X1)
        srd(k, 20, 8, 9, SZ_ACTV, WS_H2)
    X = 16
    for i in range(4):
        if which == 1:
            for t in range(2):
                k.e(f'buffer_load_dwordx2 v[{X+4*i+2*t}:{X+4*i+2*t+1}], v7, s[16:19], 0 offen offset:{i*128 + t*32}')
        else:
            k.e(f's_mov_b32 s24, {i*2048}')
            k.e(f'buffer_load_dwordx4 v[{X+4*i}:{X+4*i+3}], v6, s[16:19], s24 offen')
    nx = 8 if which == 1 else 4
    shift_i, scale_i = (0, 1) if which == 1 else (3, 4)
    SC, SH = 64, 96
    for i in range(4):
        for t in range(2):
            k.e(f's_mov_b32 s24, {scale_i*4096}')
            k.e(f'buffer_load_dwordx4 v[{SC+8*i+4*t}:{SC+8*i+4*t+3}], v8, s[12:15], s24 offen offset:{i*256 + t*64}')
            k.e(f's_mov_b32 s24, {shift_i*4096}')
            k.e(f'buffer_load_dwordx4 v[{SH+8*i+4*t}:{SH+8*i+4*t+3}], v8, s[12:15], s24 offen offset:{i*256 + t*64}')
    F = 32
    k.e('s_waitcnt vmcnt(16)')
    k.stamp(1)
    for i in range(16):
        k.e(f'v_lshlrev_b32 v{F+2*i}, 16, v{X+i}')
        k.e(f'v_and_b32 v{F+2*i+1}, 0xffff0000, v{X+i}')
    k.e(f'v_add_f32 v10, v{F}, v{F+1}')
    k.e(f'v_add_f32 v11, v{F+2}, v{F+3}')
    for i in range(2, 16):
        k.e(f'v_add_f32 v{10 + (i & 1)}, v{10 + (i & 1)}, v{F+2*i}')
        k.e(f'v_add_f32 v{10 + (i & 1)}, v{10 + (i & 1)}, v{F+2*i+1}')
    k.e('v_add_f32 v10, v10, v11')
    def wg_reduce(ldsoff):
        xor8_sum(k, 10); xor16_sum(k, 10, 11); xor32_sum(k, 10, 11)
        k.e('v_lshlrev_b32 v12, 5, v4')
        k.e('v_lshl_add_u32 v12, v1, 2, v12')
        k.e(f'ds_write_b32 v12, v10 offset:{ldsoff}')
        k.e('s_waitcnt lgkmcnt(0)\ns_barrier')
        k.e('v_lshlrev_b32 v12, 2, v1')
        for w in range(4): k.e(f'ds_read_b32 v{12+1+w}, v12 offset:{ldsoff + w*32}')
        k.e('s_waitcnt lgkmcnt(0)')
        k.e('v_add_f32 v13, v13, v14\nv_add_f32 v15, v15, v16\nv_add_f32 v10, v13, v15')
    wg_reduce(0)
    k.e(f'v_mul_f32 v10, {f32(1/1024)}, v10')
    for i in range(32): k.e(f'v_sub_f32 v{F+i}, v{F+i}, v10')
    k.e(f'v_mul_f32 v10, v{F}, v{F}')
    k.e(f'v_mul_f32 v11, v{F+1}, v{F+1}')
    for i in range(2, 32):
        k.e(f'v_fmac_f32 v{10 + (i & 1)}, v{F+i}, v{F+i}')
    k.e('v_add_f32 v10, v10, v11')
    wg_reduce(128)
    k.e(f'v_mul_f32 v10, {f32(1/1024)}, v10')
    k.e(f'v_add_f32 v10, {f32(1e-5)}, v10')
    k.e('v_rsq_f32 v10, v10')
    k.e('s_waitcnt vmcnt(0)')
    for i in range(0, 32, 2):
        a, b = SC+i, SC+i+1
        k.e(f'v_add_f32 v{a}, 1.0, v{a}')
        k.e(f'v_add_f32 v{b}, 1.0, v{b}')
        k.e(f'v_cvt_pk_bf16_f32 v11, v{a}, v{b}')
        k.e(f'v_lshlrev_b32 v{a}, 16, v11')
        k.e(f'v_and_b32 v{b}, 0xffff0000, v11')
    for i in range(32):
        k.e(f'v_mul_f32 v{F+i}, v{F+i}, v10')
        k.e(f'v_fma_f32 v{F+i}, v{F+i}, v{SC+i}, v{SH+i}')
    if which == 1:
        k.e(f's_mov_b32 s25, {f32(QSCALE)}')
        for i in range(32): k.e(f'v_mul_f32 v{F+i}, s25, v{F+i}')
    for i in range(16):
        k.e(f'v_cvt_pk_bf16_f32 v{X+i}, v{F+2*i}, v{F+2*i+1}')
    for i in range(4):
        k.e(f's_mov_b32 s24, {i*2048}')
        k.e(f'buffer_store_dwordx4 v[{X+4*i}:{X+4*i+3}], v6, s[20:23], s24 offen')
    if Kern.stamps:
        k.stamp(2); k.e('s_waitcnt vmcnt(0)'); k.stamp(3); k.e('v_lshrrev_b32 v9, 6, v0\ns_nop 1\nv_readfirstlane_b32 s64, v9\ns_nop 3'); k.flush_stamps(64)
    k.label(f'L_{name}_end')
    k.e('s_endpgm')
    return k.finish(vgpr=128, agpr=0, sgpr=32)
```

```python
from common import *
MODP = 0x8000
MODSZ = 0x20000

def bf16_round(k, a, b, tmp):
    k.e(f'v_cvt_pk_bf16_f32 v{tmp}, v{a}, v{b}')
    k.e(f'v_lshlrev_b32 v{a}, 16, v{tmp}')
    k.e(f'v_and_b32 v{b}, 0xffff0000, v{tmp}')

def stage_mod(k, shift_i, scale_i, nparts, srd, tidv, R, flags):
    a = R + 8*nparts
    k.e(f'v_lshlrev_b32 v{a}, 4, v{tidv}')
    j = 0
    for idx in (shift_i, scale_i):
        for p in range(nparts):
            k.e(f's_mov_b32 s24, {idx*4096 + p*MODP}')
            k.e(f'buffer_load_dwordx4 v[{R+4*j}:{R+4*j+3}], v{a}, s[{srd}:{srd+3}], s24 offen {flags}')
            j += 1
def stage_mod_finish(k, qscale, nparts, R, lds_sc, lds_sh):
    a = R + 8*nparts; S0 = R; C0 = R + 4*nparts
    for p in range(1, nparts):
        for r in range(4):
            k.e(f'v_add_f32 v{S0+r}, v{S0+r}, v{S0+4*p+r}')
            k.e(f'v_add_f32 v{C0+r}, v{C0+r}, v{C0+4*p+r}')
    t = S0 + 4
    for r in (0, 2):
        bf16_round(k, S0+r, S0+r+1, t)
        bf16_round(k, C0+r, C0+r+1, t)
    for r in range(4): k.e(f'v_add_f32 v{C0+r}, 1.0, v{C0+r}')
    for r in (0, 2): bf16_round(k, C0+r, C0+r+1, t)
    if qscale:
        k.e(f's_mov_b32 s24, {f32(QSCALE)}')
        for r in range(4):
            k.e(f'v_mul_f32 v{S0+r}, s24, v{S0+r}')
            k.e(f'v_mul_f32 v{C0+r}, s24, v{C0+r}')
    k.e(f'ds_write_b128 v{a}, v[{S0}:{S0+3}] offset:{lds_sh}')
    k.e(f'ds_write_b128 v{a}, v[{C0}:{C0+3}] offset:{lds_sc}')

def ln_common(k, name, which, F, X, wg_first_wait):
    pass

def kern_lnx(which, opts=None):
    opts = opts or {}
    name = opts.get('name', 'prep_kernel' if which == 1 else 'ln2_kernel')
    k = Kern(name); k.kidx = opts.get('kidx', 0); k.sv = 2
    LSC, LSH = 4096, 8192
    X = 16; F = 32; SC = 64; SH = 96; W = 64; ACC = 48 + 80
    def gemv(crit):
        tag = 'c' if crit else 'n'
        npass = 8 if crit else 16
        rows = 32 * npass
        if crit:
            k.e(f's_cmp_ge_u32 s2, 128\ns_cbranch_scc1 L_{name}_skip{tag}')
            k.e('s_and_b32 s28, s2, 31\ns_lshr_b32 s29, s2, 5')
        else:
            k.e(f's_cmp_lt_u32 s2, 128\ns_cbranch_scc1 L_{name}_skip{tag}')
            k.e('s_sub_u32 s30, s2, 128\ns_and_b32 s28, s30, 63\ns_add_u32 s28, s28, 32\ns_lshr_b32 s29, s30, 6')
        srd(k, 40, 34, 35, 1024*6144*2)
        srd(k, 44, 6, 7, 2048)
        k.e(f'v_lshlrev_b32 v9, 2, v0\ns_mul_i32 s30, s29, {rows*2}')
        k.e('buffer_load_dword v10, v9, s[44:47], s30 offen')
        k.e('v_lshrrev_b32 v11, 3, v0')
        k.e('v_mul_u32_u24 v12, 0x3000, v11\nv_lshl_add_u32 v12, v1, 4, v12')
        k.e(f's_mul_i32 s30, s29, {rows*12288}\ns_lshl_b32 s31, s28, 7\ns_add_u32 s30, s30, s31')
        for p in range(npass):
            k.e(f'buffer_load_dwordx4 v[{W+4*p}:{W+4*p+3}], v12, s[40:43], s30 offen {opts.get("wflag", "nt")}')
            if p < npass - 1: k.e(f's_add_u32 s30, s30, {32*12288}')
        k.e(f's_waitcnt vmcnt({npass})')
        k.e('v_lshlrev_b32 v13, 16, v10\nv_and_b32 v14, 0xffff0000, v10')
        for a in (13, 14):
            k.e(f'v_mul_f32 v15, {f32(-1.4426950408889634)}, v{a}')
            k.e('v_exp_f32 v15, v15\ns_nop 0\nv_add_f32 v15, 1.0, v15\nv_rcp_f32 v15, v15\ns_nop 0')
            k.e(f'v_mul_f32 v{a}, v{a}, v15')
        bf16_round(k, 13, 14, 15)
        k.e('v_lshlrev_b32 v9, 3, v0')
        k.e('v_mov_b32 v132, v13\nv_mov_b32 v133, v14')
        k.e('ds_write_b64 v9, v[132:133]')
        k.e('s_waitcnt lgkmcnt(0)\ns_barrier')
        k.e('v_lshrrev_b32 v11, 3, v0\nv_lshlrev_b32 v9, 2, v11')
        for p in range(npass): k.e(f'ds_read_b32 v{144+p}, v9 offset:{p*128}')
        A0 = 132
        for j in range(8): k.e(f'v_mov_b32 v{A0+j}, 0')
        for p in range(npass):
            k.e(f's_waitcnt vmcnt({npass-1-p}) lgkmcnt({min(npass-1-p, 15)})')
            for q in range(4):
                w = W + 4*p + q
                k.e(f'v_lshlrev_b32 v140, 16, v{w}')
                k.e(f'v_and_b32 v141, 0xffff0000, v{w}')
                k.e(f'v_fmac_f32 v{A0+2*q}, v{144+p}, v140')
                k.e(f'v_fmac_f32 v{A0+2*q+1}, v{144+p}, v141')
        for j in range(8): xor8_sum(k, A0+j)
        for j in range(8): k.e(f'v_mov_b32 v{144+j}, v{A0+j}')
        for j in range(8): k.e(f'v_permlane16_swap_b32 v{A0+j}, v{144+j}')
        for j in range(8): k.e(f'v_add_f32 v{A0+j}, v{A0+j}, v{144+j}')
        for j in range(8): k.e(f'v_mov_b32 v{144+j}, v{A0+j}')
        for j in range(8): k.e(f'v_permlane32_swap_b32 v{A0+j}, v{144+j}')
        for j in range(8): k.e(f'v_add_f32 v{A0+j}, v{A0+j}, v{144+j}')
        k.e('v_lshlrev_b32 v9, 8, v4\nv_lshl_add_u32 v9, v1, 5, v9')
        k.e('v_and_b32 v10, 63, v0\nv_cmp_gt_u32 vcc, 8, v10')
        k.e('s_and_saveexec_b64 s[30:31], vcc')
        k.e(f'ds_write_b128 v9, v[{A0}:{A0+3}] offset:2048')
        k.e(f'ds_write_b128 v9, v[{A0+4}:{A0+7}] offset:2064')
        k.e('s_mov_b64 exec, s[30:31]')
        k.e('s_waitcnt lgkmcnt(0)\ns_barrier')
        k.e('v_cmp_gt_u32 vcc, 64, v0')
        k.e('s_and_saveexec_b64 s[30:31], vcc')
        k.e(f's_cbranch_execz L_{name}_gdone{tag}')
        k.e('v_lshlrev_b32 v9, 2, v0')
        for w in range(4): k.e(f'ds_read_b32 v{A0+w}, v9 offset:{2048 + w*256}')
        k.e('s_waitcnt lgkmcnt(0)')
        k.e(f'v_add_f32 v{A0}, v{A0}, v{A0+1}\nv_add_f32 v{A0+2}, v{A0+2}, v{A0+3}\nv_add_f32 v{A0}, v{A0}, v{A0+2}')
        k.e(f's_mul_i32 s48, s29, {MODP}\ns_lshl_b32 s49, s28, 8\ns_add_u32 s48, s48, s49')
        k.e(f'buffer_store_dword v{A0}, v9, s[12:15], s48 offen sc1')
        if crit:
            k.e('s_waitcnt vmcnt(0)')
            k.e('v_mov_b32 v9, 0\nv_mov_b32 v10, 1\nv_cmp_eq_u32 vcc, 0, v0')
            k.e('s_and_saveexec_b64 s[48:49], vcc')
            k.e('global_atomic_add v9, v10, s[36:37]')
        k.label(f'L_{name}_gdone{tag}')
        k.e('s_mov_b64 exec, s[30:31]')
        k.label(f'L_{name}_skip{tag}')
        k.e('s_mov_b64 exec, -1')
    k.e(f's_cmp_ge_u32 s2, 256\ns_cbranch_scc1 L_{name}_end')
    k.e(f's_load_dwordx2 s[8:9], s[0:1], {A_WS}')
    if which == 1:
        k.e(f's_load_dwordx2 s[4:5], s[0:1], {A_X}')
        k.e(f's_load_dwordx2 s[6:7], s[0:1], {A_C}')
        k.e(f's_load_dwordx2 s[34:35], s[0:1], {A_WMOD}')
        k.e(f's_load_dwordx2 s[36:37], s[0:1], {A_DBG}')
        k.e(f's_load_dwordx2 s[38:39], s[0:1], {A_WQ}')
    k.stamp(0)
    k.e('v_and_b32 v1, 7, v0')
    k.e('v_bfe_u32 v2, v0, 3, 2')
    k.e('v_bfe_u32 v3, v0, 5, 1')
    k.e('v_lshrrev_b32 v4, 6, v0')
    k.e('v_lshl_add_u32 v5, v4, 3, v3')
    k.e('s_lshr_b32 s10, s2, 1\ns_lshl_b32 s10, s10, 15\ns_and_b32 s11, s2, 1\ns_lshl_b32 s11, s11, 7\ns_add_u32 s10, s10, s11')
    k.e('v_lshlrev_b32 v6, 10, v5\nv_lshl_add_u32 v6, v2, 8, v6\nv_lshl_add_u32 v6, v1, 4, v6\nv_add_u32 v6, s10, v6')
    if which == 1:
        k.e('s_lshl_b32 s11, s2, 14')
        k.e('v_lshlrev_b32 v7, 11, v1\nv_lshl_add_u32 v7, v5, 6, v7\nv_lshl_add_u32 v7, v2, 3, v7\nv_add_u32 v7, s11, v7')
    k.e('v_lshlrev_b32 v8, 7, v5\nv_lshl_add_u32 v8, v2, 4, v8')
    k.e('s_waitcnt lgkmcnt(0)')
    srd(k, 12, 8, 9, MODSZ, WS_MOD)
    if which == 1:
        srd(k, 16, 4, 5, SZ_ACTV)
        srd(k, 20, 8, 9, SZ_ACTV, WS_H1)
    else:
        srd(k, 16, 8, 9, SZ_ACTV, WS_X1)
        srd(k, 20, 8, 9, SZ_ACTV, WS_H2)
    for i in range(4):
        if which == 1:
            for t in range(2):
                k.e(f'buffer_load_dwordx2 v[{X+4*i+2*t}:{X+4*i+2*t+1}], v7, s[16:19], 0 offen offset:{i*128 + t*32}')
        else:
            k.e(f's_mov_b32 s24, {i*2048}')
            k.e(f'buffer_load_dwordx4 v[{X+4*i}:{X+4*i+3}], v6, s[16:19], s24 offen')
    R = 128
    if which == 2:
        stage_mod(k, 3, 4, 2, 12, 0, R, '')
    if which == 1:
        gemv(True)
    k.e('s_waitcnt vmcnt(2)' if which == 1 else 's_waitcnt vmcnt(4)')
    if which == 1: k.e(f's_cmp_lt_u32 s2, 128\ns_cbranch_scc1 L_{name}_xok\ns_waitcnt vmcnt(0)'); k.label(f'L_{name}_xok')
    k.stamp(1)
    for i in range(16):
        k.e(f'v_lshlrev_b32 v{F+2*i}, 16, v{X+i}')
        k.e(f'v_and_b32 v{F+2*i+1}, 0xffff0000, v{X+i}')
    k.e(f'v_add_f32 v10, v{F}, v{F+1}\nv_add_f32 v11, v{F+2}, v{F+3}')
    for i in range(2, 16):
        k.e(f'v_add_f32 v{10 + (i & 1)}, v{10 + (i & 1)}, v{F+2*i}')
        k.e(f'v_add_f32 v{10 + (i & 1)}, v{10 + (i & 1)}, v{F+2*i+1}')
    k.e('v_add_f32 v10, v10, v11')
    def wg_reduce(ldsoff):
        xor8_sum(k, 10); xor16_sum(k, 10, 11); xor32_sum(k, 10, 11)
        k.e('v_lshlrev_b32 v12, 5, v4\nv_lshl_add_u32 v12, v1, 2, v12')
        k.e(f'ds_write_b32 v12, v10 offset:{ldsoff}')
        k.e('s_waitcnt lgkmcnt(0)\ns_barrier')
        k.e('v_lshlrev_b32 v12, 2, v1')
        for w in range(4): k.e(f'ds_read_b32 v{13+w}, v12 offset:{ldsoff + w*32}')
        k.e('s_waitcnt lgkmcnt(0)')
        k.e('v_add_f32 v13, v13, v14\nv_add_f32 v15, v15, v16\nv_add_f32 v10, v13, v15')
    wg_reduce(3072)
    if which == 1:
        k.e('v_mov_b32 v18, v10')
        gemv(False)
        k.e('v_mov_b32 v10, v18')
    k.e(f'v_mul_f32 v10, {f32(1/1024)}, v10')
    for i in range(32): k.e(f'v_sub_f32 v{F+i}, v{F+i}, v10')
    k.e(f'v_mul_f32 v10, v{F}, v{F}\nv_mul_f32 v11, v{F+1}, v{F+1}')
    for i in range(2, 32): k.e(f'v_fmac_f32 v{10 + (i & 1)}, v{F+i}, v{F+i}')
    k.e('v_add_f32 v10, v10, v11')
    if which == 2:
        k.e('s_waitcnt vmcnt(0)')
        stage_mod_finish(k, False, 2, R, LSC, LSH)
    wg_reduce(3200)
    k.e(f'v_mul_f32 v10, {f32(1/1024)}, v10\nv_add_f32 v10, {f32(1e-5)}, v10\nv_rsq_f32 v10, v10\ns_nop 0')
    for i in range(32): k.e(f'v_mul_f32 v{F+i}, v{F+i}, v10')
    if which == 1:
        k.stamp(2)
        k.e('v_readfirstlane_b32 s48, v4')
        k.e(f's_cmp_lg_u32 s48, 0\ns_cbranch_scc1 L_{name}_polled')
        k.e('v_mov_b32 v9, 0\ns_mov_b32 s49, 0x400000')
        k.label(f'L_{name}_poll')
        k.e('global_load_dword v10, v9, s[36:37] sc1')
        k.e('s_waitcnt vmcnt(0)')
        k.e('v_readfirstlane_b32 s50, v10')
        k.e('s_sub_u32 s49, s49, 1')
        k.e(f's_cmp_eq_u32 s49, 0\ns_cbranch_scc1 L_{name}_polled')
        k.e(f's_cmp_lt_u32 s50, 128\ns_cbranch_scc1 L_{name}_poll')
        k.label(f'L_{name}_polled')
        k.e('s_barrier')
        k.stamp(3)
        stage_mod(k, 0, 1, 4, 12, 0, R, 'sc1')
        k.e('s_waitcnt vmcnt(0)')
        stage_mod_finish(k, True, 4, R, LSC, LSH)
        k.e('s_waitcnt lgkmcnt(0)\ns_barrier')
    for i in range(4):
        for t in range(2):
            k.e(f'ds_read_b128 v[{SC+8*i+4*t}:{SC+8*i+4*t+3}], v8 offset:{LSC + i*256 + t*64}')
            k.e(f'ds_read_b128 v[{SH+8*i+4*t}:{SH+8*i+4*t+3}], v8 offset:{LSH + i*256 + t*64}')
    for i in range(4):
        k.e(f's_waitcnt lgkmcnt({12 - 4*i})')
        for j in range(8):
            x = F + 8*i + j
            k.e(f'v_fma_f32 v{x}, v{x}, v{SC+8*i+j}, v{SH+8*i+j}')
        for u in range(4): k.e(f'v_cvt_pk_bf16_f32 v{X+4*i+u}, v{F+8*i+2*u}, v{F+8*i+2*u+1}')
        k.e(f's_mov_b32 s24, {i*2048}')
        k.e(f'buffer_store_dwordx4 v[{X+4*i}:{X+4*i+3}], v6, s[20:23], s24 offen')
    if which == 1 and opts.get('pfwq', True):
        srd(k, 40, 38, 39, 1024*4096*2)
        k.e('v_and_b32 v9, 63, v0\nv_lshlrev_b32 v9, 4, v9')
        k.e('s_lshl_b32 s30, s2, 2\ns_add_u32 s30, s30, s48\ns_lshl_b32 s30, s30, 13')
        for i in range(8):
            if i == 4: k.e('s_add_u32 s30, s30, 4096')
            k.e(f'buffer_load_dwordx4 v[{64+4*i}:{67+4*i}], v9, s[40:43], s30 offen offset:{(i%4)*1024}')
    if Kern.stamps:
        k.stamp(4 if which == 1 else 2); k.e('s_waitcnt vmcnt(0)'); k.stamp(5 if which == 1 else 3); k.e('v_lshrrev_b32 v9, 6, v0\ns_nop 1\nv_readfirstlane_b32 s64, v9\ns_nop 3'); k.flush_stamps(64)
    k.label(f'L_{name}_end')
    k.e('s_endpgm')
    return k.finish(vgpr=176, agpr=0, sgpr=64)
```

```python
import sys
from k_prep import *
from k_gemm1024 import *
from k_gateup import *
from k_attn import *
from k_prep2 import kern_lnx
def build(path, order=None, G=None):
    G = G or {}
    def O(i, nm=None):
        d = dict(kidx=i)
        d.update(G.get(nm, {}))
        return d
    ks = {
      'mod': (lambda: kern_mod(O(0)), 96, 1024, 8192),
      'ln1': (lambda: kern_ln(1, O(1)), 256, 256, 1024),
      'attn': (lambda: kern_attn(O(1, 'attn')), 256, 256, 131072),
      'wo': (lambda: kern_gemm1024('wo', O(2, 'wo')), 256, 256, 98304),
      'ln2': (lambda: kern_lnx(2, O(3, 'ln2')), 256, 256, 12288),
      'prep': (lambda: kern_lnx(1, O(0, 'prep')), 256, 256, 83968),
      'gateup': (lambda: kern_gateup(O(4, 'gateup')), 256, 256, 114688),
      'down': (lambda: kern_gemm1024('down', O(5, 'down')), 256, 256, 98304),
    }
    order = order or ['prep', 'attn', 'wo', 'ln2', 'gateup', 'down']
    hdr = open('adaLN_cond__mha_block_cached__swiglu_ffn__prompt.s.ref').read().split('; Override launch')[0]
    s = hdr
    for o in order:
        f, g, b, l = ks[o]
        s += f'; @launch kernel={o}_kernel grid=({g},1,1) block=({b},1,1) lds={l}\n'
    s += '.amdgcn_target "amdgcn-amd-amdhsa--gfx950"\n'
    for o in order:
        s += ks[o][0]()
    open(path, 'w').write(s)
    print('wrote', path, len(s), 'bytes', s.count('\n'), 'lines')
if __name__ == '__main__':
    G = {}
    for a in sys.argv[2:]:
        if a == 'stamps': Kern.stamps = True
        else:
            kk, v = a.split('='); kn, on = kk.split('.')
            G.setdefault(kn, {})[on] = eval(v)
    build(sys.argv[1] if len(sys.argv) > 1 else 'full.s', G=G)
```

```python
import sys
from k_prep import *
from k_gemm1024 import *
from k_gateup import *
from k_attn import *
from k_prep2 import kern_lnx
from k_gemm2 import kern_gemm2
def build(path, order=None, G=None):
    G = G or {}
    def O(i, nm=None):
        d = dict(kidx=order.index(nm) if nm in order else i)
        d.update(G.get(nm, {}))
        return d
    order = order or G.get('all', {}).get('order') or (['prep', 'attn', 'wo', 'gateup', 'down'] if G.get('wo', {}).get('ln', True) else ['prep', 'attn', 'wo', 'ln2', 'gateup', 'down'])
    ks = {
      'mod': (lambda: kern_mod(O(0)), 96, 1024, 8192),
      'ln1': (lambda: kern_ln(1, O(1)), 256, 256, 1024),
      'attn': (lambda: kern_attn(O(1, 'attn')), 256, 256, 131072),
      'wo': ((lambda: kern_gemm1024('wo', O(2, 'wo')), 256, 256, 98304) if G.get('all', {}).get('s1') else (lambda: kern_gemm2('wo', O(2, 'wo')), 256, 256, 90112)),
      'ln2': (lambda: kern_lnx(2, O(3, 'ln2')), 256, 256, 12288),
      'prep': (lambda: kern_lnx(1, O(0, 'prep')), 256, 256, 83968),
      'gateup': (lambda: kern_gateup(O(4, 'gateup')), 256, 256, 114688),
      'down': ((lambda: kern_gemm1024('down', O(5, 'down')), 256, 256, 98304) if G.get('all', {}).get('s1') else (lambda: kern_gemm2('down', O(5, 'down')), 256, 256, 90112)),
    }
    def kern_empty(nm):
        k = Kern(nm); k.e('s_endpgm'); return k.finish(vgpr=8, agpr=0, sgpr=16)
    for i in range(4): ks[f'empty{i}'] = ((lambda i=i: kern_empty(f'empty{i}_kernel')), 256, 256, 0)
    hdr = open('adaLN_cond__mha_block_cached__swiglu_ffn__prompt.s.ref').read().split('; Override launch')[0]
    s = hdr
    for o in order:
        f, g, b, l = ks[o]
        s += f'; @launch kernel={o}_kernel grid=({g},1,1) block=({b},1,1) lds={l}\n'
    s += '.amdgcn_target "amdgcn-amd-amdhsa--gfx950"\n'
    for o in order:
        s += ks[o][0]()
    open(path, 'w').write(s)
    print('wrote', path, len(s), 'bytes', s.count('\n'), 'lines')
if __name__ == '__main__':
    G = {}
    for a in sys.argv[2:]:
        if a == 'stamps': Kern.stamps = True
        else:
            kk, v = a.split('='); kn, on = kk.split('.')
            G.setdefault(kn, {})[on] = eval(v)
    build(sys.argv[1] if len(sys.argv) > 1 else 'full.s', G=G)
```

```python
from common import *
from sched import *

T_THRESH = 80.0

def kern_attn(opts=None):
    opts = opts or {}
    name = opts.get('name', 'attn_kernel')
    k = Kern(name); k.kidx = opts.get('kidx', 0)
    KA = 8; VA = 12; KD = 20; VD = 24; WD = 26; AV = 30
    NEGM = 36
    MX = 52
    FF = 56
    TMP = 60
    S = [64, 128]
    QACC = 64
    aO = 0; aQ = 128; aL = 192; aONE = 208; aFR = 212
    KSLOT = lambda n: (n & 3) * 16384
    VSLOT = lambda n: ((n + 2) & 3) * 16384
    k.e(f's_cmp_ge_u32 s2, 256\ns_cbranch_scc1 L_{name}_end')
    k.e(f's_load_dwordx2 s[4:5], s[0:1], {A_WS}')
    k.e(f's_load_dwordx2 s[6:7], s[0:1], {A_WQ}')
    k.e(f's_load_dwordx2 s[8:9], s[0:1], {A_K}')
    k.e(f's_load_dwordx2 s[10:11], s[0:1], {A_V}')
    PF = opts.get('pf', True)
    if PF:
        k.e(f's_load_dwordx2 s[48:49], s[0:1], {A_WO}')
        k.e(f's_load_dwordx2 s[54:55], s[0:1], {A_WG}')
        k.e(f's_load_dwordx2 s[56:57], s[0:1], {A_WU}')
        k.e(f's_load_dwordx2 s[58:59], s[0:1], {A_WD}')
    k.stamp(0)
    k.e('v_lshrrev_b32 v2, 6, v0')
    k.e('v_and_b32 v1, 63, v0')
    k.e('v_readfirstlane_b32 s32, v2')
    k.e('s_and_b32 s37, s2, 7\ns_lshl_b32 s37, s37, 2\ns_lshr_b32 s38, s2, 6\ns_add_u32 s37, s37, s38')
    k.e('s_lshr_b32 s38, s2, 3\ns_and_b32 s38, s38, 7')
    k.e('s_lshl_b32 s35, s32, 12')
    k.e('v_lshrrev_b32 v4, 4, v1')
    k.e('v_and_b32 v5, 15, v1')
    k.e('v_lshlrev_b32 v3, 4, v1')
    k.e('v_xor_b32 v6, v4, v5\nv_lshlrev_b32 v6, 4, v6\nv_lshl_add_u32 v6, v5, 8, v6')
    for s in range(4): k.e(f'v_xor_b32 v{KA+s}, {s*64}, v6')
    k.e('v_bfe_u32 v6, v1, 2, 2')
    k.e('v_lshl_add_u32 v6, v4, 2, v6')
    k.e('v_and_b32 v7, 7, v6')
    k.e('v_lshlrev_b32 v7, 5, v7\nv_lshl_add_u32 v7, v6, 8, v7')
    k.e('v_and_b32 v6, 3, v1\nv_lshl_add_u32 v7, v6, 3, v7')
    k.e('v_add_u32 v7, 0x8000, v7')
    for db in range(8): k.e(f'v_xor_b32 v{VA+db}, {db*32}, v7')
    for n in range(4):
        k.e(f'v_add_u32 v6, {4*n}, v4')
        k.e('v_xor_b32 v7, v5, v6\nv_lshlrev_b32 v7, 4, v7')
        k.e(f'v_lshl_add_u32 v{KD+n}, v4, 8, v7')
    for n in range(2):
        k.e(f'v_add_u32 v6, {4*n}, v4')
        k.e('v_lshrrev_b32 v7, 1, v5\nv_xor_b32 v7, v7, v6\nv_lshlrev_b32 v7, 5, v7')
        k.e('v_and_b32 v6, 1, v5\nv_lshl_add_u32 v7, v6, 4, v7')
        k.e(f'v_lshl_add_u32 v{VD+n}, v4, 8, v7')
    for n in range(4):
        k.e(f'v_lshlrev_b32 v6, 8, v4\nv_sub_u32 v7, v{VD+(n&1)}, v6')
        k.e(f'v_add_u32 v6, {4*n}, v4\nv_lshl_add_u32 v7, v6, 13, v7')
        k.e(f'v_subrev_u32 v{WD+n}, {1024*n}, v7')
    k.e(f'v_mov_b32 v{AV}, v3')
    for i in range(1, 4): k.e(f'v_add_u32 v{AV+i}, {i*32768}, v3')
    k.e('s_lshl_b32 s33, s38, 4\ns_lshl_b32 s39, s32, 2\ns_add_u32 s33, s33, s39\ns_lshl_b32 s33, s33, 15')
    k.e('s_lshl_b32 s34, s32, 17\ns_lshl_b32 s39, s37, 8\ns_add_u32 s34, s34, s39')
    k.e('s_waitcnt lgkmcnt(0)')
    srd(k, 12, 4, 5, SZ_ACTV, WS_H1)
    srd(k, 16, 6, 7, 1024*4096*2)
    k.e('s_lshl_b32 s39, s37, 19\ns_add_u32 s39, s39, s35')
    k.e('s_add_u32 s20, s8, s39\ns_addc_u32 s21, s9, 0')
    k.e('s_sub_u32 s22, 0x80000, s35\ns_mov_b32 s23, 0x20000')
    k.e('s_add_u32 s24, s10, s39\ns_addc_u32 s25, s11, 0')
    k.e('s_mov_b32 s26, s22\ns_mov_b32 s27, 0x20000')
    srd(k, 28, 4, 5, 2048*4096*2, WS_O)
    if PF:
        k.e('s_mov_b32 s50, 0x800000\ns_mov_b32 s51, 0x20000')
        k.e('s_lshl_b32 s60, s2, 2\ns_add_u32 s60, s60, s32\ns_lshl_b32 s60, s60, 10\ns_mov_b32 s52, s60\ns_mov_b32 s53, 0')
    k.e(f's_mov_b32 s46, {f32(T_THRESH)}')
    k.e('s_mov_b32 s45, 0')
    KVF = opts.get('kvflag', '')
    em = Emitter(k)
    def emit_now(lst):
        for it in lst: em.emit(it)
    def dmaK(n, soff, rel=0, dl=10**9, st='dma'):
        out = [light(f's_add_u32 m0, s35, {KSLOT(n)}', rel, dl, st)]
        for p in range(4): out.append(vmem(f'buffer_load_dwordx4 v{KD+p}, s[20:23], {soff} offen offset:{1024*p} {KVF}lds', ('K', n), rel, dl, st))
        return out
    def dmaV(n, soff, rel=0, dl=10**9, st='dma'):
        out = [light(f's_add_u32 m0, s35, {65536 + VSLOT(n)}', rel, dl, st)]
        for p in range(4): out.append(vmem(f'buffer_load_dwordx4 v{VD+(p&1)}, s[24:27], {soff} offen offset:{1024*p} {KVF}lds', ('V', n), rel, dl, st))
        return out
    def dmaW(s, rel=0, dl=10**9, st='dma'):
        out = [light(f's_add_u32 m0, s35, {32768 + (s & 3)*16384}', rel, dl, st)]
        for p in range(4): out.append(vmem(f'buffer_load_dwordx4 v{WD+p}, s[16:19], s34 offen offset:{1024*p} lds', ('W', s), rel, dl, st))
        out.append(light(f's_add_u32 s34, s34, {64*8192}', rel, dl, st))
        return out
    def loadH(s, rel=0, dl=10**9):
        out = []; st = 'vmH'
        for kk in range(2):
            for i in range(4):
                b = aO + 32*(s % 4) + 16*kk + 4*i
                out.append(vmem(f'buffer_load_dwordx4 a[{b}:{b+3}], v{AV+i}, s[12:15], s33 offen offset:{kk*1024}', ('H', s), rel, dl, st))
        out.append(light('s_add_u32 s33, s33, 2048', rel, dl, st))
        return out
    def rdW(gi, rel=0, dl=10**9):
        s, db = divmod(gi, 8)
        buf = aFR + 8*(gi % 4)
        base = (s & 3)*16384
        return [dsr(f'ds_read_b64_tr_b16 a[{buf+4*kk+2*t}:{buf+4*kk+2*t+1}], v{VA+db} offset:{base + kk*8192 + t*4096}', ('R', gi), rel, dl, 'ds') for kk in range(2) for t in range(2)]
    HD = opts.get('HD', 3)
    PDW = 2
    emit_now(dmaW(0)); emit_now(loadH(0))
    em.emit(wait(wvm=('W', 0)))
    k.e('s_barrier')
    k.stamp(1)
    for gi in range(PDW): emit_now(rdW(gi))
    def qsegment(g0, g1, NG, NS, extra=None, first=False):
        mf = []; pinned = {}; items = []
        if first:
            items += spread(dmaW(1) + dmaW(2), 1, 2, 1)
            hl = []
            for s in range(1, HD): hl += loadH(s)
            items += spread(hl, 2, 2, 1)
        for gi in range(g0, g1):
            s, db = divmod(gi, 8)
            m0 = 8*(gi - g0)
            pin = [wait(wvm=('H', s) if db == 0 else None, wlg=('R', gi))]
            nxt = gi + PDW
            if nxt < NG:
                if nxt % 8 == 0: pin += [wait(wvm=('W', nxt // 8)), It('s_barrier', 4, 'light')]
                items += rdW(nxt, rel=m0, dl=m0 + 7)
            pinned[m0] = pin
            if db == 0:
                if s + HD < NS: items += spread(loadH(s + HD), m0 + (2 if not (first and s == 0) else 36), 5 if not (first and s == 0) else 2)
                if s + 3 < NS: items += spread(dmaW(s + 3), m0 + 8*(8 - PDW) + 1, 4, 2)
                if extra and (s in extra): items += extra[s](m0)
            buf = aFR + 8*(gi % 4)
            for qb in range(4):
                for kk in range(2):
                    acc = QACC + (db*4 + qb)*4
                    hb = aO + 32*(s % 4) + 16*kk + 4*qb
                    c = '0' if (first and s == 0 and kk == 0) else f'v[{acc}:{acc+3}]'
                    mf.append(f'v_mfma_f32_16x16x32_bf16 v[{acc}:{acc+3}], a[{buf+4*kk}:{buf+4*kk+3}], a[{hb}:{hb+3}], {c}')
        return schedule(em, mf, pinned, items, verbose=opts.get('verbose', False), vm_space=3)
    BIG = 10**9
    qsegment(0, 32, BIG, BIG, first=True)
    k.e('s_mov_b32 s36, 2')
    emit_loop(k, f'L_{name}_qloop', lambda t: qsegment(32*(t+1), 32*(t+2), BIG, BIG))
    k.e(f's_sub_u32 s36, s36, 1\ns_cmp_lg_u32 s36, 0\ns_cbranch_scc1 L_{name}_qloop')
    k.e('s_mov_b32 s44, 0\ns_mov_b32 s47, 16384')
    extras = {13: lambda m0: spread(dmaK(0, 's44') + dmaV(0, 's44'), m0 + 4, 7),
              14: lambda m0: spread(dmaK(1, 's47') + dmaV(1, 's47'), m0 + 4, 7)}
    qsegment(96, 128, 128, 16, extras)
    k.stamp(2)
    for qb in range(4):
        for s in range(4):
            t = TMP
            a0 = QACC + ((2*s)*4 + qb)*4; b0 = QACC + ((2*s+1)*4 + qb)*4
            t = 192 + 4*((qb*4+s) % 8)
            k.e(f'v_cvt_pk_bf16_f32 v{t}, v{a0}, v{a0+1}')
            k.e(f'v_cvt_pk_bf16_f32 v{t+1}, v{a0+2}, v{a0+3}')
            k.e(f'v_cvt_pk_bf16_f32 v{t+2}, v{b0}, v{b0+1}')
            k.e(f'v_cvt_pk_bf16_f32 v{t+3}, v{b0+2}, v{b0+3}')
            k.e('s_nop 1')
            k.e(f'v_permlane32_swap_b32 v{t}, v{t+2}\nv_permlane32_swap_b32 v{t+1}, v{t+3}')
            k.e('s_nop 1')
            k.e(f'v_permlane16_swap_b32 v{t}, v{t+2}\nv_permlane16_swap_b32 v{t+1}, v{t+3}')
            q = aQ + (qb*4 + s)*4
            for u in range(4): k.e(f'v_accvgpr_write_b32 a{q+u}, v{t+u}')
    for db in range(8): k.e(f'v_add_u32 v{VA+db}, 0x8000, v{VA+db}')
    for i in range(128): k.e(f'v_accvgpr_write_b32 a{aO+i}, 0')
    for i in range(16): k.e(f'v_accvgpr_write_b32 a{aL+i}, 0')
    k.e('v_mov_b32 v2, 0x3f803f80')
    for i in range(4): k.e(f'v_accvgpr_write_b32 a{aONE+i}, v2')
    k.e('s_waitcnt vmcnt(0)')
    k.e('s_barrier')
    em.vm.q = []; em.lg.q = []
    k.stamp(3)
    k.e('s_mov_b32 s47, 32768')
    emit_now(dmaK(2, 's47'))
    def rdK(n, kb, rel=0, dl=10**9):
        return [dsr(f'ds_read_b128 a[{aFR + 16*(kb & 1) + 4*s}:{aFR + 16*(kb & 1) + 4*s + 3}], v{KA+s} offset:{KSLOT(n) + kb*4096}', ('RK', n, kb), rel, dl, 'ds') for s in range(4)]
    def rdV(n, db, rel=0, dl=10**9):
        out = []
        for ks2 in range(2):
            buf = aFR + 8*(db & 3) + 4*ks2
            for t in range(2):
                out.append(dsr(f'ds_read_b64_tr_b16 a[{buf+2*t}:{buf+2*t+1}], v{VA+db} offset:{VSLOT(n) + (32*ks2 + 16*t)*256}', ('RV', n, db), rel, dl, 'ds'))
        return out
    def Sreg(n, kb, qb):
        return S[n & 1] + (qb*2 + (kb >> 1))*8 + (kb & 1)*4
    def qk_mfma(n, kb, qb, s, czero=False):
        d = Sreg(n, kb, qb); buf = aFR + 16*(kb & 1) + 4*s; q = aQ + (qb*4 + s)*4
        if s == 0: c = '0' if czero else f'v[{NEGM+4*qb}:{NEGM+4*qb+3}]'
        else: c = f'v[{d}:{d+3}]'
        return f'v_mfma_f32_16x16x32_bf16 v[{d}:{d+3}], a[{buf}:{buf+3}], a[{q}:{q+3}], {c}'
    def pv_mfma(n, db, qb, ks2):
        o = aO + (db*4 + qb)*4; buf = aFR + 8*(db & 3) + 4*ks2; p = S[n & 1] + (qb*2 + ks2)*8
        return f'v_mfma_f32_16x16x32_bf16 a[{o}:{o+3}], a[{buf}:{buf+3}], v[{p}:{p+3}], a[{o}:{o+3}]'
    def sum_mfma(n, qb, ks2):
        l = aL + 4*qb; p = S[n & 1] + (qb*2 + ks2)*8
        return f'v_mfma_f32_16x16x32_bf16 a[{l}:{l+3}], a[{aONE}:{aONE+3}], v[{p}:{p+3}], a[{l}:{l+3}]'
    def max_ops(n, qb):
        vals = [Sreg(n, kb, qb) + r for kb in range(4) for r in range(4)]
        m = MX + qb
        ops = [(0, f'v_max3_f32 v{m}, v{vals[0]}, v{vals[1]}, v{vals[2]}')]
        for i in range(1, 7): ops.append(((2*i+2)//4, f'v_max3_f32 v{m}, v{m}, v{vals[2*i+1]}, v{vals[2*i+2]}'))
        ops.append((3, f'v_max_f32 v{m}, v{m}, v{vals[15]}'))
        return ops
    def EC(n, u, rel, dl, deps):
        qb, ks2 = u >> 1, u & 1
        b = S[n & 1] + (qb*2 + ks2)*8
        es = [It(f'v_exp_f32 v{b+r}, v{b+r}', 8, 'light', None, rel, dl, deps, 'E') for r in range(8)]
        cs = [It(f'v_cvt_pk_bf16_f32 v{b+u2}, v{b+2*u2}, v{b+2*u2+1}', 4, 'light', None, rel, dl + 2, [es[2*u2+1]], 'C') for u2 in range(4)]
        return es + cs
    rare_sites = []; resc_sites = []
    def check_items(n, tag, mitems, rel):
        lab = f'L_{name}_rare_{tag}'; back = f'L_{name}_back_{tag}'
        rare_sites.append((n, lab, back))
        c1 = It(f'v_max3_f32 v{TMP}, v{MX}, v{MX+1}, v{MX+2}', 4, 'light', None, rel, rel + 6, mitems, 'M')
        c2 = It(f'v_max_f32 v{TMP}, v{TMP}, v{MX+3}', 4, 'light', None, rel, rel + 7, [], 'M')
        c3 = It(f'v_cmp_lt_f32 vcc, s46, v{TMP}\ns_cbranch_vccnz {lab}\n{back}:', 8, 'light', None, rel, rel + 8, [c2], 'M')
        return [c1, c2, c3]
    def pend_item(tag, rel):
        lab = f'L_{name}_resc_{tag}'; back = f'L_{name}_rback_{tag}'
        resc_sites.append((lab, back))
        return It(f's_cmp_lg_u32 s45, 0\ns_cbranch_scc1 {lab}\n{back}:', 8, 'light', None, rel, rel + 6, [], 'pend')
    NUY = opts.get('NUY', 4)
    def iteration(j, nt_last=None, tag=''):
        hasX = (nt_last is None or j + 1 <= nt_last)
        hasNextX = (nt_last is None or j + 2 <= nt_last)
        tg = tag + f'_{j & 3}'
        mf = []; pinned = {}; items = []
        n = j + 1
        off = 0
        if hasX:
            for kb in range(4):
                for qb in range(4):
                    for s in range(4): mf.append(qk_mfma(n, kb, qb, s))
                pinned[16*kb] = [wait(wlg=('RK', n, kb))]
            items += rdK(n, 1, 0, 8) + rdK(n, 2, 15, 24) + rdK(n, 3, 31, 40)
            items += rdV(j, 0, 47, 60) + rdV(j, 1, 47, 64)
            items.append(pend_item(tg, 1))
            dm = []
            DL = 116
            if nt_last is None or j + 3 <= nt_last: dm += dmaK(j + 3, 's44', 2, DL)
            if nt_last is None or j + 2 <= nt_last: dm += dmaV(j + 2, 's47', 2, DL)
            if PF: dm += [vmem('buffer_load_dwordx4 v[192:195], v3, s[48:51], s52 offen', ('P', j), 2, DL, 'dma'), light('s_add_u32 s52, s52, 0x100000', 2, DL + 8, 'dma')]
            dm += [light('s_add_u32 s44, s44, 16384', 2, DL + 9, 'dma'), light('s_add_u32 s47, s47, 16384', 2, DL + 10, 'dma')]
            items += spread(dm, opts.get('vst', 6), opts.get('vms', 12))
            for u in range(NUY, 8): items += EC(j, u, 0, 60, [])
            mitems = []
            for i in range(8):
                for qb in range(4):
                    kbn, txt = max_ops(n, qb)[i]
                    it = It(txt, 4, 'light', None, 16*kbn + 4*qb + 3 + 3, 70, [], 'M')
                    mitems.append(it)
            items += mitems
            off = 64
        else:
            for u in range(NUY, 8):
                for it in EC(j, u, 0, 0, []): em.emit(it)
            em.emit(pend_item(tg, 0))
            emit_now(rdV(j, 0) + rdV(j, 1))
        for qb in range(4):
            for ks2 in range(2): mf.append(sum_mfma(j, qb, ks2))
        for db in range(8):
            m0 = off + 8 + 8*db
            for qb in range(4):
                for ks2 in range(2): mf.append(pv_mfma(j, db, qb, ks2))
            pinned.setdefault(m0, []).append(wait(wlg=('RV', j, db)))
            if db + 4 < 8: items += rdV(j, db + 4, m0 + 7, m0 + 20)
        items += rdV(j, 2, off, off + 12) + rdV(j, 3, off, off + 20)
        mb = off + 8 + 8*6
        if hasNextX:
            pinned.setdefault(mb, []).extend([wait(wvm=[('K', j + 2), ('V', j + 1)]), It('s_barrier', 4, 'light')])
            items += rdK(j + 2, 0, mb, mb + 12)
        elif hasX:
            pinned.setdefault(mb, []).extend([wait(wvm=[('V', j + 1)]), It('s_barrier', 4, 'light')])
        if hasX:
            chk = check_items(n, tg, mitems, 64)
            items += chk
            for u in range(NUY): items += EC(n, u, 66, 135, [chk[2]])
        ds = sorted([it for it in items if it.stream == 'ds'], key=lambda it: it.rel)
        items = [it for it in items if it.stream != 'ds'] + ds
        return schedule(em, mf, pinned, items, verbose=opts.get('verbose', False), vm_space=4)

    emit_now(rdK(0, 0) + rdK(0, 1))
    mf = []; pinned = {}; items = []
    for kb in range(4):
        for qb in range(4):
            for s in range(4): mf.append(qk_mfma(0, kb, qb, s, czero=True))
        pinned[16*kb] = [wait(wlg=('RK', 0, kb))]
    items += rdK(0, 2, 15, 24) + rdK(0, 3, 31, 40) + rdK(1, 0, 47, 56)
    schedule(em, mf, pinned, items)
    k.e('s_nop 7')
    for qb in range(4):
        for _, t in max_ops(0, qb): k.e(t)
    for qb in range(4):
        xor16_sum(k, MX + qb, TMP, 'v_max_f32'); xor32_sum(k, MX + qb, TMP, 'v_max_f32')
    for qb in range(4):
        for r in range(4): k.e(f'v_sub_f32 v{NEGM+4*qb+r}, 0, v{MX+qb}')
        for kb in range(4):
            for r in range(4):
                x = Sreg(0, kb, qb) + r
                k.e(f'v_sub_f32 v{x}, v{x}, v{MX+qb}')
    for u in range(NUY):
        its = EC(0, u, 0, 0, [])
        for it in its[:8]: em.emit(it)
        k.e('s_nop 0')
        for it in its[8:]: em.emit(it)
    k.e('s_mov_b32 s44, 49152\ns_mov_b32 s47, 32768')
    k.stamp(4)
    k.e('s_mov_b32 s36, 7')
    def abody(t):
        nr, ns = len(rare_sites), len(resc_sites)
        for j in range(4*t, 4*t + 4): iteration(j, None, 'a')
        if t > 0:
            del rare_sites[nr:]; del resc_sites[ns:]
    emit_loop(k, f'L_{name}_loop', abody)
    if PF:
        k.e('s_add_u32 s53, s53, 1')
        for idx, sp in ((2, 54), (4, 56), (6, 58)):
            k.e(f's_cmp_eq_u32 s53, {idx}\ns_cselect_b32 s48, s{sp}, s48\ns_cselect_b32 s49, s{sp+1}, s49')
        k.e('s_cmp_ge_u32 s53, 2\ns_cselect_b32 s50, 0x700000, s50')
        k.e('s_bitcmp1_b32 s53, 0\ns_cselect_b32 s52, s52, s60')
    k.e(f's_sub_u32 s36, s36, 1\ns_cmp_lg_u32 s36, 0\ns_cbranch_scc1 L_{name}_loop')
    for j in range(8, 12): iteration(j, 11, 'c')
    k.stamp(5)
    k.e('s_nop 7')
    for qb in range(4):
        k.e(f'v_accvgpr_read_b32 v{MX+qb}, a{aL+4*qb}')
    k.e('s_nop 0')
    for qb in range(4): k.e(f'v_rcp_f32 v{MX+qb}, v{MX+qb}')
    k.e('s_lshl_b32 s39, s38, 4\ns_lshl_b32 s40, s32, 2\ns_add_u32 s39, s39, s40\ns_lshl_b32 s39, s39, 17\ns_lshl_b32 s40, s37, 12\ns_add_u32 s39, s39, s40')
    cnt = 0
    for qb in range(4):
        for s in range(4):
            t = 64 + 16*(cnt % 4); cnt += 1
            for h in range(2):
                o = aO + ((2*s + h)*4 + qb)*4
                for r in range(4): k.e(f'v_accvgpr_read_b32 v{t+4*h+r}, a{o+r}')
            for i in range(8): k.e(f'v_mul_f32 v{t+i}, v{t+i}, v{MX+qb}')
            for u in range(4): k.e(f'v_cvt_pk_bf16_f32 v{t+8+u}, v{t+2*u}, v{t+2*u+1}')
            k.e(f'buffer_store_dwordx4 v[{t+8}:{t+11}], v3, s[28:31], s39 offen offset:{s*1024} {opts.get("stflag", "")}')
        k.e('s_add_u32 s39, s39, 0x20000')
    if Kern.stamps:
        k.stamp(6); k.e('s_waitcnt vmcnt(0)'); k.stamp(7); k.flush_stamps(32)
    k.e('s_endpgm')
    for (n, lab, back) in rare_sites:
        k.label(lab)
        for qb in range(4):
            xor16_sum(k, MX + qb, TMP, 'v_max_f32'); xor32_sum(k, MX + qb, TMP, 'v_max_f32')
        for qb in range(4):
            k.e(f'v_max_f32 v{MX+qb}, 0, v{MX+qb}')
            k.e(f'v_sub_f32 v{TMP}, 0, v{MX+qb}')
            k.e(f'v_exp_f32 v{FF+qb}, v{TMP}')
            for r in range(4): k.e(f'v_sub_f32 v{NEGM+4*qb+r}, v{NEGM+4*qb+r}, v{MX+qb}')
            for kb in range(4):
                for r in range(4):
                    x = Sreg(n, kb, qb) + r
                    k.e(f'v_sub_f32 v{x}, v{x}, v{MX+qb}')
        k.e('s_mov_b32 s45, 1')
        k.e('s_nop 1')
        k.e(f's_branch {back}')
    for (lab, back) in resc_sites:
        k.label(lab)
        k.e('s_nop 7\ns_nop 7')
        for qb in range(4):
            regs_ = [aO + (db*4 + qb)*4 + r for db in range(8) for r in range(4)] + [aL + 4*qb + r for r in range(4)]
            for i in range(0, len(regs_), 4):
                for u in range(4): k.e(f'v_accvgpr_read_b32 v{TMP+u}, a{regs_[i+u]}')
                for u in range(4): k.e(f'v_mul_f32 v{TMP+u}, v{TMP+u}, v{FF+qb}')
                for u in range(4): k.e(f'v_accvgpr_write_b32 a{regs_[i+u]}, v{TMP+u}')
        k.e('s_mov_b32 s45, 0')
        k.e('s_nop 1')
        k.e(f's_branch {back}')
    k.label(f'L_{name}_end')
    k.e('s_endpgm')
    return k.finish(vgpr=256, agpr=256, sgpr=64)
```

```python
from common import *
from sched import *

def kern_gateup(opts=None):
    opts = opts or {}
    name = opts.get('name', 'gateup_kernel')
    k = Kern(name); k.kidx = opts.get('kidx', 0)
    STG = 28672; REG = 14336
    AV = 8
    WV = 12
    TR = 20
    WF = 168
    ACT = 40
    k.e(f's_cmp_ge_u32 s2, 256\ns_cbranch_scc1 L_{name}_end')
    k.e(f's_load_dwordx2 s[4:5], s[0:1], {A_WS}')
    k.e(f's_load_dwordx2 s[6:7], s[0:1], {A_WG}')
    k.e(f's_load_dwordx2 s[8:9], s[0:1], {A_WU}')
    k.stamp(0)
    k.e('v_lshrrev_b32 v2, 6, v0')
    k.e('v_and_b32 v1, 63, v0')
    k.e('v_readfirstlane_b32 s32, v2')
    k.e('s_and_b32 s37, s2, 7\ns_lshr_b32 s38, s2, 3')
    k.e('s_lshl_b32 s40, s37, 2\ns_and_b32 s41, s38, 3\ns_add_u32 s40, s40, s41')
    k.e('s_lshr_b32 s39, s38, 2')
    k.e('v_lshlrev_b32 v3, 4, v1')
    k.e(f'v_mov_b32 v{AV}, v3')
    for i in range(1, 4): k.e(f'v_add_u32 v{AV+i}, {i*32768}, v3')
    k.e('s_lshl_b32 s33, s39, 4\ns_lshl_b32 s42, s32, 2\ns_add_u32 s33, s33, s42\ns_lshl_b32 s33, s33, 15')
    for n in range(7):
        k.e(f'v_add_u32 v4, {64*n}, v1')
        k.e('v_mul_u32_u24 v5, 4682, v4\nv_lshrrev_b32 v5, 16, v5')
        k.e('v_mul_u32_u24 v6, 14, v5\nv_sub_u32 v6, v4, v6')
        k.e('v_mul_u32_u24 v5, 7168, v5\nv_lshl_add_u32 v5, v6, 4, v5')
        k.e(f'v_subrev_u32 v{WV+n}, {1024*(n&3)}, v5')
    k.e('s_and_b32 s42, s32, 1\ns_mul_i32 s34, s42, 229376\ns_mul_i32 s43, s40, 224\ns_add_u32 s34, s34, s43')
    k.e(f's_lshr_b32 s43, s32, 1\ns_mul_i32 s35, s43, {REG}\ns_mul_i32 s42, s42, 7168\ns_add_u32 s35, s35, s42')
    k.e('v_lshrrev_b32 v4, 4, v1\nv_bfe_u32 v5, v1, 2, 2\nv_lshl_add_u32 v5, v4, 2, v5')
    k.e('v_mul_u32_u24 v5, 224, v5\nv_and_b32 v6, 3, v1')
    k.e(f'v_lshl_add_u32 v{TR}, v6, 3, v5')
    k.e(f'v_add_u32 v{TR+1}, {2*STG}, v{TR}')
    k.e('s_waitcnt lgkmcnt(0)')
    srd(k, 12, 4, 5, SZ_ACTV, WS_H2)
    k.e('s_cmp_lt_u32 s32, 2')
    k.e('s_cselect_b32 s16, s6, s8\ns_cselect_b32 s17, s7, s9')
    k.e(f's_mov_b32 s18, {1024*3584*2}\ns_mov_b32 s19, 0x20000')
    srd(k, 20, 4, 5, 2048*3584*2, WS_ACT)
    em = Emitter(k)
    def emit_now(lst):
        for it in lst: em.emit(it)
    def dma(s):
        slot = s % 4; st = 'dma'
        out = []
        for n in range(7):
            if n % 4 == 0:
                out.append(light(f's_add_u32 m0, s35, {slot*STG + 4096*(n//4)}', stream=st))
            if opts.get('noW'): continue
            out.append(vmem(f'buffer_load_dwordx4 v{WV+n}, s[16:19], s34 offen offset:{1024*(n&3)} lds', ('W', s), stream=st))
        out.append(light(f's_add_u32 s34, s34, {64*7168}', stream=st))
        return out
    def actl(s):
        out = []; st = 'vmA'
        for kk in range(2):
            for i in range(4):
                b = ACT + 32*(s % 4) + 16*kk + 4*i
                if opts.get('noA'): continue
                out.append(vmem(f'buffer_load_dwordx4 v[{b}:{b+3}], v{AV+i}, s[12:15], s33 offen offset:{kk*1024}', ('A', s), stream=st))
        out.append(light('s_add_u32 s33, s33, 2048', stream=st))
        return out
    def rd(gi, rel=0, dl=10**9):
        s, j = divmod(gi, 14)
        slot = s % 4
        b = j // 2; reg = j & 1
        buf = WF + 8*(gi % 4)
        a = TR + (slot >> 1)
        out = []
        for kk in range(2):
            base = (slot & 1) * STG + reg * REG + kk * 7168 + b * 32
            for t in range(2):
                out.append(dsr(f'ds_read_b64_tr_b16 v[{buf+4*kk+2*t}:{buf+4*kk+2*t+1}], v{a} offset:{base + t*3584}', ('R', gi), rel, dl, 'ds'))
        return out
    AD = opts.get('AD', 2); PD = 2
    emit_now(dma(0)); emit_now(actl(0))
    em.emit(wait(wvm=('W', 0)))
    k.e('s_barrier')
    k.stamp(1)
    for gi in range(PD): emit_now(rd(gi))
    def segment(g0, g1, NG, NS, first=False):
        mf = []; pinned = {}; items = []
        if first:
            items += spread(dma(1) + dma(2), 1, 3, 1)
            for s in range(1, AD): items += spread(actl(s), 2, 3, 1)
        for gi in range(g0, g1):
            s, j = divmod(gi, 14)
            m0 = 8*(gi - g0)
            pin = [wait(wvm=('A', s) if j == 0 else None, wlg=('R', gi))]
            nxt = gi + PD
            if nxt < NG:
                if nxt % 14 == 0: pin += [wait(wvm=('W', nxt // 14)), It('s_barrier', 4, 'light')]
                items += rd(nxt, rel=m0, dl=m0 + 7)
            pinned[m0] = pin
            if j == 0:
                if s + AD < NS: items += spread(actl(s + AD), m0 + (2 if not (first and s == 0) else 50), 7 if not (first and s == 0) else 5)
                if s + 3 < NS: items += spread(dma(s + 3), m0 + 8*(14 - PD) - 40 if False else m0 + 8*(14 - PD) + 1, 2, 1) if False else []
            if j == 0 and s + 3 < NS:
                pass
            b = j // 2; reg = j & 1
            buf = WF + 8*(gi % 4)
            for i in range(4):
                for kk in range(2):
                    acc = ((reg * 7 + b) * 4 + i) * 4
                    ab = ACT + 32*(s % 4) + 16*kk + 4*i
                    c = '0' if (first and s == 0 and kk == 0) else f'a[{acc}:{acc+3}]'
                    mf.append(f'v_mfma_f32_16x16x32_bf16 a[{acc}:{acc+3}], v[{buf+4*kk}:{buf+4*kk+3}], v[{ab}:{ab+3}], {c}')
        for s in range(g0 // 14, g1 // 14):
            m0 = 8*(14*s - g0)
            if s + 3 < NS: items += spread(dma(s + 3), m0 + 60, 7)
        return schedule(em, mf, pinned, items, verbose=opts.get('verbose', False), vm_space=3)
    BIG = 10**9
    segment(0, 56, BIG, BIG, first=True)
    k.e('s_mov_b32 s36, 2')
    emit_loop(k, f'L_{name}_loop', lambda t: segment(56*(t+1), 56*(t+2), BIG, BIG))
    k.e('s_sub_u32 s36, s36, 1\ns_cmp_lg_u32 s36, 0')
    k.e(f's_cbranch_scc1 L_{name}_loop')
    segment(168, 224, 224, 16)
    k.stamp(2)
    k.e(f's_lshl_b32 s33, s39, 4\ns_lshl_b32 s42, s32, 2\ns_add_u32 s33, s33, s42\ns_mul_i32 s33, s33, {112*1024}')
    k.e('s_mul_i32 s41, s40, 7')
    for b in range(7):
        k.e(f's_add_u32 s42, s41, {b}\ns_lshr_b32 s43, s42, 1\ns_lshl_b32 s43, s43, 10\ns_and_b32 s42, s42, 1\ns_lshl_b32 s42, s42, 3\ns_add_u32 s43, s43, s42\ns_add_u32 s{44+b}, s43, s33')
    k.e(f'v_mov_b32 v{AV}, v3')
    for i in range(1, 4): k.e(f'v_add_u32 v{AV+i}, {i*112*1024}, v3')
    k.e(f's_mov_b32 s52, {f32(-1.4426950408889634)}')
    T = ACT
    cnt = 0
    for b in range(7):
        for i in range(4):
            g = ((0 * 7 + b) * 4 + i) * 4; u = ((1 * 7 + b) * 4 + i) * 4
            t = T + 16 * (cnt % 4); cnt += 1
            for r in range(4): k.e(f'v_accvgpr_read_b32 v{t+r}, a{g+r}')
            for r in range(4): k.e(f'v_accvgpr_read_b32 v{t+4+r}, a{u+r}')
            for r in range(4): k.e(f'v_mul_f32 v{t+8+r}, s52, v{t+r}')
            for r in range(4): k.e(f'v_exp_f32 v{t+8+r}, v{t+8+r}')
            for r in range(4): k.e(f'v_mul_f32 v{t+r}, v{t+r}, v{t+4+r}')
            for r in range(4): k.e(f'v_add_f32 v{t+8+r}, 1.0, v{t+8+r}')
            for r in range(4): k.e(f'v_rcp_f32 v{t+8+r}, v{t+8+r}')
            k.e('s_nop 0')
            for r in range(4): k.e(f'v_mul_f32 v{t+r}, v{t+r}, v{t+8+r}')
            k.e(f'v_cvt_pk_bf16_f32 v{t+12}, v{t}, v{t+1}')
            k.e(f'v_cvt_pk_bf16_f32 v{t+13}, v{t+2}, v{t+3}')
            k.e(f'buffer_store_dwordx2 v[{t+12}:{t+13}], v{AV+i}, s[20:23], s{44+b} offen {opts.get("stflag", "")}')
    if Kern.stamps:
        k.stamp(3); k.e('s_waitcnt vmcnt(0)'); k.stamp(4); k.flush_stamps(32)
    k.label(f'L_{name}_end')
    k.e('s_endpgm')
    return k.finish(vgpr=200, agpr=224, sgpr=56)
```

```python
from common import *
from k_prep2 import MODP, MODSZ, bf16_round
from sched import *
WS_XCH = 0x3000000

def kern_gemm2(which, opts=None, suffix=''):
    opts = opts or {}
    name = f'{which}{suffix}_kernel'
    k = Kern(name); k.kidx = opts.get('kidx', 0)
    if which == 'wo':
        KD_, act_off, wptr, gidx = 4096, WS_O, A_WO, 2
    else:
        KD_, act_off, wptr, gidx = 3584, WS_ACT, A_WD, 5
    nks = KD_ // 32
    nst = nks // 4
    AV = 8; WD = 10; VA = 16; WF = 24; ACT = 64; XR = 128; GV = 144; T = 176
    AD = opts.get('AD', 3)
    k.e(f's_cmp_ge_u32 s2, 256\ns_cbranch_scc1 L_{name}_end')
    k.e(f's_load_dwordx2 s[4:5], s[0:1], {A_WS}')
    k.e(f's_load_dwordx2 s[6:7], s[0:1], {wptr}')
    k.e(f's_load_dwordx2 s[8:9], s[0:1], {A_X if which == "wo" else A_OUT}')
    k.e(f's_load_dwordx2 s[10:11], s[0:1], {A_DBG}')
    k.stamp(0)
    k.e('v_lshrrev_b32 v2, 6, v0\nv_and_b32 v1, 63, v0\nv_readfirstlane_b32 s32, v2')
    k.e('s_and_b32 s37, s2, 7\ns_lshr_b32 s38, s2, 3')
    if opts.get('xmap', 1) == 0:
        k.e('s_and_b32 s41, s38, 1')
        k.e('s_lshr_b32 s39, s37, 1\ns_lshl_b32 s39, s39, 2\ns_lshr_b32 s40, s38, 3\ns_add_u32 s39, s39, s40')
        k.e('s_and_b32 s40, s37, 1\ns_lshl_b32 s40, s40, 2\ns_bfe_u32 s42, s38, 0x20001\ns_add_u32 s40, s40, s42')
    else:
        k.e('s_and_b32 s41, s37, 1')
        k.e('s_lshr_b32 s39, s37, 1\ns_lshl_b32 s39, s39, 2\ns_lshr_b32 s40, s38, 3\ns_add_u32 s39, s39, s40')
        k.e('s_and_b32 s40, s38, 7')
    k.e('s_lshl_b32 s44, s39, 3\ns_add_u32 s44, s44, s40')
    k.e('s_lshl_b32 s35, s32, 12')
    k.e('v_lshrrev_b32 v4, 4, v1\nv_and_b32 v5, 15, v1\nv_lshlrev_b32 v3, 4, v1')
    k.e(f'v_mov_b32 v{AV}, v3\nv_add_u32 v{AV+1}, {nks*1024}, v3')
    k.e(f's_lshl_b32 s33, s39, 3\ns_lshl_b32 s42, s32, 1\ns_add_u32 s33, s33, s42\ns_mul_i32 s33, s33, {nks*1024}')
    k.e(f's_mul_i32 s42, s41, {nks*512}\ns_add_u32 s33, s33, s42')
    for n in range(4):
        k.e(f'v_add_u32 v6, {4*n}, v4\nv_and_b32 v7, 7, v6')
        k.e('v_lshrrev_b32 v2, 1, v5\nv_xor_b32 v7, v7, v2\nv_lshlrev_b32 v7, 5, v7')
        k.e('v_and_b32 v2, 1, v5\nv_lshl_add_u32 v7, v2, 4, v7')
        k.e(f'v_lshl_add_u32 v7, v6, 11, v7\nv_subrev_u32 v{WD+n}, {1024*n}, v7')
    k.e(f's_mul_i32 s34, s41, {KD_//2*2048}\ns_lshl_b32 s42, s32, 15\ns_add_u32 s34, s34, s42\ns_lshl_b32 s42, s40, 8\ns_add_u32 s34, s34, s42')
    k.e('v_bfe_u32 v6, v1, 2, 2\nv_lshl_add_u32 v6, v4, 2, v6\nv_and_b32 v7, 7, v6')
    k.e('v_lshlrev_b32 v7, 5, v7\nv_lshl_add_u32 v7, v6, 8, v7\nv_and_b32 v6, 3, v1\nv_lshl_add_u32 v7, v6, 3, v7')
    k.e('s_lshl_b32 s42, s41, 7\nv_xor_b32 v7, s42, v7')
    for nb in range(8): k.e(f'v_xor_b32 v{VA+nb}, {nb*32}, v7')
    k.e('s_waitcnt lgkmcnt(0)')
    srd(k, 12, 4, 5, 2048*KD_*2, act_off)
    srd(k, 16, 6, 7, KD_*2048)
    srd(k, 20, 4, 5, MODSZ, WS_MOD)
    if which == 'wo':
        srd(k, 24, 8, 9, SZ_ACTV); srd(k, 28, 4, 5, SZ_ACTV, WS_X1)
    else:
        srd(k, 24, 4, 5, SZ_ACTV, WS_X1); srd(k, 28, 8, 9, SZ_ACTV)
    srd(k, 48, 4, 5, 0x800000, WS_XCH)
    em = Emitter(k)
    FR = 64
    PD = opts.get('PD', 4)
    def dmaW(s, rel=0, dl=10**9):
        st = 'vmW'
        out = [light(f's_add_u32 m0, s35, {(s & 3)*16384}', rel, dl, st)]
        for p in range(4): out.append(vmem(f'buffer_load_dwordx4 v{WD+p}, s[16:19], s34 offen offset:{1024*p} lds', ('W', s), rel, dl, st))
        out.append(light(f's_add_u32 s34, s34, {64*2048}', rel, dl, st))
        return out
    def loadA(s, rel=0, dl=10**9):
        st = 'vmA'; out = []
        for kk in range(2):
            for i in range(2):
                b = ACT + 16*(s % 4) + 8*kk + 4*i
                out.append(vmem(f'buffer_load_dwordx4 v[{b}:{b+3}], v{AV+i}, s[12:15], s33 offen offset:{kk*1024}', ('A', s), rel, dl, st))
        out.append(light('s_add_u32 s33, s33, 2048', rel, dl, st))
        return out
    def rdW(gi, rel=0, dl=10**9):
        s, nb = divmod(gi, 8)
        buf = FR + 8*(gi % 8)
        base = (s & 3)*16384
        return [dsr(f'ds_read_b64_tr_b16 a[{buf+4*kk+2*t}:{buf+4*kk+2*t+1}], v{VA+nb} offset:{base + kk*8192 + t*4096}', ('R', gi), rel, dl, 'ds') for kk in range(2) for t in range(2)]
    def emit_now(lst):
        for it in lst: em.emit(it)
    WDIST = opts.get('WDIST', 3)
    emit_now(dmaW(0)); emit_now(loadA(0)); emit_now(dmaW(1)); emit_now(loadA(1))
    em.emit(wait(wvm=('W', 0)))
    k.e('s_barrier')
    k.stamp(1)
    for gi in range(PD): emit_now(rdW(gi))
    def epi_loads():
        out = []
        out.append(light('v_lshlrev_b32 v2, 4, v4', stream='epi'))
        out.append(light(f's_lshl_b32 s42, s40, 9\ns_lshl_b32 s43, s41, 8\ns_add_u32 s42, s42, s43\ns_add_u32 s42, s42, {gidx*4096}', stream='epi'))
        for pp in range(2):
            for nb in range(4):
                out.append(vmem(f'buffer_load_dwordx4 v[{GV+16*pp+4*nb}:{GV+16*pp+4*nb+3}], v2, s[20:23], s42 offen offset:{nb*64}', 'epi', stream='epi'))
            if pp == 0: out.append(light(f's_add_u32 s42, s42, {MODP}', stream='epi'))
        if which == 'wo':
            out.append(light('v_lshlrev_b32 v6, 11, v5\nv_lshl_add_u32 v6, v4, 3, v6', stream='epi'))
            out.append(light('s_lshl_b32 s42, s39, 18\ns_lshl_b32 s43, s32, 16\ns_add_u32 s42, s42, s43\ns_lshl_b32 s43, s40, 8\ns_add_u32 s42, s42, s43\ns_lshl_b32 s43, s41, 7\ns_add_u32 s42, s42, s43', stream='epi'))
            for i in range(2):
                for nb in range(4):
                    out.append(vmem(f'buffer_load_dwordx2 v[{XR+8*i+2*nb}:{XR+8*i+2*nb+1}], v6, s[24:27], s42 offen offset:{nb*32}', 'epi', stream='epi'))
                if i == 0: out.append(light('s_add_u32 s42, s42, 0x8000', stream='epi'))
        else:
            out.append(light('s_lshl_b32 s42, s39, 18\ns_lshl_b32 s43, s32, 16\ns_add_u32 s42, s42, s43\ns_lshl_b32 s43, s40, 12\ns_add_u32 s42, s42, s43\ns_lshl_b32 s43, s41, 11\ns_add_u32 s42, s42, s43', stream='epi'))
            for i in range(2):
                for p in range(2):
                    out.append(vmem(f'buffer_load_dwordx4 v[{XR+8*i+4*p}:{XR+8*i+4*p+3}], v3, s[24:27], s42 offen offset:{p*1024}', 'epi', stream='epi'))
                if i == 0: out.append(light('s_add_u32 s42, s42, 0x8000', stream='epi'))
        return out
    def segment(g0, g1, NG, NS, extra=None, first=False):
        mf = []; pinned = {}; items = []
        if first:
            items += spread(dmaW(2), 1, 2, 1)
            for s in range(2, AD): items += spread(loadA(s), 2, 2, 1)
        for gi in range(g0, g1):
            s, nb = divmod(gi, 8)
            m0 = 4*(gi - g0)
            pin = []
            if gi % 2 == 0:
                pin.append(wait(wvm=('A', s) if nb == 0 else None, wlg=('R', min(gi + 1, NG - 1))))
            nxt = gi + PD
            if nxt < NG:
                if nxt % 8 == 0:
                    pin += [wait(wvm=('W', nxt // 8)), It('s_barrier', 4, 'light')]
                items += rdW(nxt, rel=m0, dl=m0 + 7)
            if pin: pinned[m0] = pin
            if nb == 0:
                if s + AD < NS: items += spread(loadA(s + AD), m0 + (1 if not (first and s == 0) else 12), 4 if not (first and s == 0) else 2, 2)
                if s + WDIST < NS: items += spread(dmaW(s + WDIST), m0 + 4*(8 - PD) + 1, 4, 2)
            buf = FR + 8*(gi % 8)
            for q in range(4):
                i, kk = q >> 1, q & 1
                acc = (nb*2 + i)*4
                ab = ACT + 16*(s % 4) + 8*kk + 4*i
                c = '0' if (first and s == 0 and kk == 0) else f'a[{acc}:{acc+3}]'
                mf.append(f'v_mfma_f32_16x16x32_bf16 a[{acc}:{acc+3}], a[{buf+4*kk}:{buf+4*kk+3}], v[{ab}:{ab+3}], {c}')
        if extra:
            for it in extra: it.rel = 40; it.dl = 4*(g1 - g0) - 8
            items += extra
        return schedule(em, mf, pinned, items, verbose=opts.get('verbose', False), vm_space=3)
    BIG = 10**9
    segment(0, 32, BIG, BIG, first=True)
    k.e(f's_mov_b32 s36, {nst//4 - 2}')
    emit_loop(k, f'L_{name}_loop', lambda t: segment(32*(t+1), 32*(t+2), BIG, BIG))
    k.e(f's_sub_u32 s36, s36, 1\ns_cmp_lg_u32 s36, 0\ns_cbranch_scc1 L_{name}_loop')
    segment(96, 128, 128, 16, epi_loads())
    k.stamp(2)
    k.e('s_lshl_b32 s42, s44, 1\ns_add_u32 s43, s42, s41\ns_lshl_b32 s43, s43, 2\ns_add_u32 s43, s43, s32\ns_lshl_b32 s43, s43, 13')
    k.e('s_xor_b32 s45, s41, 1\ns_add_u32 s45, s42, s45\ns_lshl_b32 s45, s45, 2\ns_add_u32 s45, s45, s32\ns_lshl_b32 s45, s45, 13')
    for b in range(8):
        acc = (8 + b)*4
        if b == 4: k.e('s_add_u32 s43, s43, 4096')
        k.e(f'buffer_store_dwordx4 a[{acc}:{acc+3}], v3, s[48:51], s43 offen offset:{(b%4)*1024} sc1')
    OWN = ACT
    for i in range(32): k.e(f'v_accvgpr_read_b32 v{OWN+i}, a{i}')
    k.e('s_waitcnt vmcnt(0)')
    k.e('s_barrier')
    k.stamp(3)
    k.e(f's_cmp_lg_u32 s32, 0\ns_cbranch_scc1 L_{name}_polled')
    k.e('s_lshr_b32 s42, s44, 1\ns_lshl_b32 s42, s42, 2\nv_mov_b32 v6, s42')
    k.e('s_and_b32 s42, s44, 1\ns_lshl_b32 s42, s42, 4\ns_lshl_b32 s46, 1, s42\nv_mov_b32 v7, s46')
    k.e('s_mov_b64 s[52:53], exec\ns_mov_b64 exec, 1')
    k.e('global_atomic_add v2, v6, v7, s[10:11] sc0')
    k.e('s_waitcnt vmcnt(0)')
    k.e('v_readfirstlane_b32 s46, v2')
    k.e('s_lshr_b32 s46, s46, s42\ns_and_b32 s46, s46, 0xffff')
    k.e(f's_cmp_ge_u32 s46, 1\ns_cbranch_scc1 L_{name}_pdone')
    k.e('s_mov_b32 s47, 0x400000')
    k.label(f'L_{name}_poll')
    k.e('global_load_dword v7, v6, s[10:11] sc1')
    k.e('s_waitcnt vmcnt(0)')
    k.e('v_readfirstlane_b32 s46, v7')
    k.e('s_sub_u32 s47, s47, 1')
    k.e(f's_cmp_eq_u32 s47, 0\ns_cbranch_scc1 L_{name}_pdone')
    k.e('s_lshr_b32 s46, s46, s42\ns_and_b32 s46, s46, 0xffff')
    k.e(f's_cmp_lt_u32 s46, 2\ns_cbranch_scc1 L_{name}_poll')
    k.label(f'L_{name}_pdone')
    k.e('s_mov_b64 exec, s[52:53]')
    k.label(f'L_{name}_polled')
    k.e('s_barrier')
    k.stamp(4)
    PR = ACT + 32
    for b in range(8):
        if b == 4: k.e('s_add_u32 s45, s45, 4096')
        k.e(f'buffer_load_dwordx4 v[{PR+4*b}:{PR+4*b+3}], v3, s[48:51], s45 offen offset:{(b%4)*1024} sc1')
    for i in range(16): k.e(f'v_add_f32 v{GV+i}, v{GV+i}, v{GV+16+i}')
    for i in range(0, 16, 2): bf16_round(k, GV+i, GV+i+1, T)
    k.e('s_waitcnt vmcnt(0)')
    for i in range(32): k.e(f'v_add_f32 v{OWN+i}, v{OWN+i}, v{PR+i}')
    P = T + 2
    for i in range(2):
        for nb in range(4):
            for u in range(2):
                xr = XR + 8*i + 2*nb + u
                o = OWN + (nb*2 + i)*4 + 2*u
                k.e(f'v_lshlrev_b32 v{T}, 16, v{xr}')
                k.e(f'v_and_b32 v{T+1}, 0xffff0000, v{xr}')
                k.e(f'v_fma_f32 v{o}, v{o}, v{GV+4*nb+2*u}, v{T}')
                k.e(f'v_fma_f32 v{o+1}, v{o+1}, v{GV+4*nb+2*u+1}, v{T+1}')
                k.e(f'v_cvt_pk_bf16_f32 v{P + i*8 + nb*2 + u}, v{o}, v{o+1}')
    if which == 'wo':
        k.e('s_lshl_b32 s42, s39, 18\ns_lshl_b32 s43, s32, 16\ns_add_u32 s42, s42, s43\ns_lshl_b32 s43, s40, 12\ns_add_u32 s42, s42, s43\ns_lshl_b32 s43, s41, 11\ns_add_u32 s42, s42, s43')
        for i in range(2):
            for p in range(2):
                r = P + i*8 + p*4
                k.e(f'buffer_store_dwordx4 v[{r}:{r+3}], v3, s[28:31], s42 offen offset:{p*1024}')
            if i == 0: k.e('s_add_u32 s42, s42, 0x8000')
    else:
        for i in range(2):
            for p in range(2):
                r = P + i*8 + p*4
                for u in range(2): k.e(f'v_permlane32_swap_b32 v{r+u}, v{r+2+u}')
                k.e('s_nop 0')
                for u in range(2): k.e(f'v_permlane16_swap_b32 v{r+u}, v{r+2+u}')
        k.e('v_lshlrev_b32 v6, 11, v5\nv_lshl_add_u32 v6, v4, 4, v6')
        k.e('s_lshl_b32 s42, s39, 18\ns_lshl_b32 s43, s32, 16\ns_add_u32 s42, s42, s43\ns_lshl_b32 s43, s40, 8\ns_add_u32 s42, s42, s43\ns_lshl_b32 s43, s41, 7\ns_add_u32 s42, s42, s43')
        for i in range(2):
            for p in range(2):
                r = P + i*8 + p*4
                k.e(f'buffer_store_dwordx4 v[{r}:{r+3}], v6, s[28:31], s42 offen offset:{p*64}')
            if i == 0: k.e('s_add_u32 s42, s42, 0x8000')
    if Kern.stamps:
        k.stamp(5); k.e('s_waitcnt vmcnt(0)'); k.stamp(6); k.flush_stamps(32)
    k.label(f'L_{name}_end')
    k.e('s_endpgm')
    return k.finish(vgpr=196, agpr=128, sgpr=56)
```

```python
from common import *

class It:
    __slots__ = ('text', 'cost', 'kind', 'tag', 'rel', 'dl', 'deps', 'stream', 'gap', 'wvm', 'wlg', 'atomic_next')
    def __init__(self, text, cost=4, kind='light', tag=None, rel=0, dl=10**9, deps=(), stream=None, wvm=None, wlg=None):
        self.text = text; self.cost = cost; self.kind = kind; self.tag = tag
        self.rel = rel; self.dl = dl; self.deps = list(deps); self.stream = stream
        self.gap = None; self.wvm = wvm; self.wlg = wlg
def vmem(text, tag, rel=0, dl=10**9, stream='vm', deps=()): return It(text, 20, 'vmem', tag, rel, dl, deps, stream)
def dsr(text, tag, rel=0, dl=10**9, stream='ds', deps=()): return It(text, 4, 'ds', tag, rel, dl, deps, stream)
def light(text, rel=0, dl=10**9, stream=None, cost=4, deps=()): return It(text, cost, 'light', None, rel, dl, deps, stream)
def wait(wvm=None, wlg=None): return It(None, 4, 'wait', None, wvm=wvm, wlg=wlg)

class Emitter:
    def __init__(self, k):
        self.k = k; self.vm = Counter(); self.lg = Counter()
    def emit(self, it):
        k = self.k
        if it.kind == 'wait':
            w = []
            def cnt(c, tags):
                if tags is None: return None
                if not isinstance(tags, list): tags = [tags]
                vals = [c.count_after(t) for t in tags]
                vals = [v for v in vals if v is not None]
                return min(vals) if vals else None
            a = cnt(self.vm, it.wvm); b = cnt(self.lg, it.wlg)
            if a is not None: w.append(f'vmcnt({min(a, 63)})')
            if b is not None: w.append(f'lgkmcnt({min(b, 15)})')
            if w: k.e('s_waitcnt ' + ' '.join(w))
            return
        k.e(it.text)
        if it.kind == 'vmem' and it.tag is not None: self.vm.issue(it.tag)
        if it.kind == 'ds': self.lg.issue(it.tag)

def schedule(em, mfmas, pinned, items, verbose=False, vm_space=1):
    n = len(mfmas)
    streams = {}
    for i, it in enumerate(items):
        streams.setdefault(it.stream if it.stream is not None else ('_', i), []).append(it)
    heads = {s: 0 for s in streams}
    total = 0
    last_vm = -10
    out = []
    def avail(it, g):
        if it.rel > g: return False
        for d in it.deps:
            if d.gap is None or d.gap >= g: return False
        return True
    for g in range(n):
        for it in pinned.get(g, []): out.append(it)
        out.append(mfmas[g])
        nxt_pin = sum(p.cost for p in pinned.get(g + 1, []))
        budget = 8 - nxt_pin
        used = 0
        placed = []
        while True:
            cands = []
            for s, lst in streams.items():
                h = heads[s]
                if h < len(lst) and avail(lst[h], g): cands.append(lst[h])
            if not cands: break
            forced = [c for c in cands if c.dl <= g]
            pick = None
            if forced:
                pick = min(forced, key=lambda c: c.dl)
            else:
                vms = [c for c in cands if c.kind == 'vmem']
                if used == 0 and nxt_pin == 0 and vms and g - last_vm >= vm_space:
                    pick = min(vms, key=lambda c: c.dl)
                else:
                    rem = budget - used
                    fit = [c for c in cands if c.kind != 'vmem' and c.cost <= rem]
                    if not fit: break
                    pick = min(fit, key=lambda c: (c.dl, -c.cost))
                    if rem == 8:
                        big = [c for c in fit if c.cost == 8]
                        small = [c for c in fit if c.cost == 4]
                        if pick.cost == 4 and big:
                            others = [c for c in small if c is not pick]
                            nxt_same = None
                            s = pick.stream if pick.stream is not None else None
                            if s is not None and heads[s] + 1 < len(streams[s]):
                                c2 = streams[s][heads[s] + 1]
                                if c2.cost == 4 and c2.kind != 'vmem' and c2.rel <= g and all(d.gap is not None and d.gap < g for d in c2.deps): nxt_same = c2
                            if not others and nxt_same is None: pick = min(big, key=lambda c: c.dl)
            pick.gap = g
            s = pick.stream if pick.stream is not None else [kk for kk, v in streams.items() if v[0] is pick][0]
            heads[s] += 1
            placed.append(pick); used += pick.cost
            if pick.kind == 'vmem': last_vm = g
            if used >= budget and not any(c.dl <= g for s2, l2 in streams.items() if heads[s2] < len(l2) for c in [l2[heads[s2]]] if avail(c, g)): break
        out += placed
        total += max(16, 8 + used + nxt_pin)
    left = []
    for s, lst in streams.items(): left += lst[heads[s]:]
    for it in left:
        it.gap = n; out.append(it)
    total += sum(it.cost for it in left)
    for it in pinned.get(n, []): out.append(it)
    for o in out:
        if isinstance(o, str): em.k.e(o)
        else: em.emit(o)
    if verbose: print(f'[sched] {n} mfma, model {total} cycles, leftovers {len(left)}')
    return total


def spread(lst, start, step, slack=None):
    slack = step - 1 if slack is None else slack
    pos = start
    out = list(lst)
    nxt = [None]*len(out)
    p = start
    for i, it in enumerate(out):
        if it.kind == 'vmem':
            it.rel = p; it.dl = p + slack; p += step
    last = None
    for i in range(len(out) - 1, -1, -1):
        it = out[i]
        if it.kind == 'vmem': last = it
        else:
            if last is not None: it.rel = max(0, last.rel - 3); it.dl = last.rel
            else: it.rel = p - step + 1; it.dl = p + 4
    return out
```

```python
import re

def regs(tok):
    tok = tok.strip()
    neg = tok.lstrip('-')
    if neg.startswith('abs(') or neg.startswith('|'):
        neg = neg.replace('abs(', '').replace(')', '').replace('|', '')
    tok = neg
    m = re.fullmatch(r'([vas])(\d+)', tok)
    if m: return [(m.group(1), int(m.group(2)))]
    m = re.fullmatch(r'([vas])\[(\d+):(\d+)\]', tok)
    if m: return [(m.group(1), i) for i in range(int(m.group(2)), int(m.group(3)) + 1)]
    if tok == 'vcc': return [('s', 'vcc')]
    if tok == 'exec': return [('s', 'exec')]
    if tok == 'm0': return [('s', 'm0')]
    if tok in ('vcc_lo', 'vcc_hi'): return [('s', 'vcc')]
    return []

TRANS = ('v_exp_f32', 'v_log_f32', 'v_rcp_f32', 'v_rsq_f32', 'v_sqrt_f32', 'v_sin_f32', 'v_cos_f32', 'v_rcp_iflag_f32')

class Ins:
    def __init__(self, text):
        self.text = text
        t = text.split(';')[0].strip()
        self.label = None; self.op = None
        self.defs = set(); self.uses = set(); self.kind = 'other'
        if not t: self.kind = 'empty'; return
        if t.endswith(':'):
            self.kind = 'label'; self.label = t[:-1]; return
        if t.startswith('.'):
            self.kind = 'dir'; return
        parts = t.split(None, 1)
        op = parts[0]; self.op = op
        rest = parts[1] if len(parts) > 1 else ''
        ops = [o.strip() for o in re.split(r',(?![^\[]*\])', rest)] if rest else []
        mods = ''
        if ops:
            last = ops[-1].split(None, 1)
            ops[-1] = last[0]
            mods = last[1] if len(last) > 1 else ''
        self.ops = ops; self.mods = mods
        R = [regs(o) for o in ops]
        base = re.sub(r'_(e32|e64|dpp|sdwa)$', '', op)
        self.base = base
        self.dpp = ('row_' in mods or 'quad_perm' in mods or op.endswith('_dpp'))
        if base.startswith('v_mfma'):
            self.kind = 'mfma'
            self.D = R[0]; self.A = R[1]; self.B = R[2]; self.C = R[3]
            self.defs = set(R[0]); self.uses = set(R[1] + R[2] + R[3])
            self.passes = 4 if '16x16x32' in base else 8
        elif base.startswith('v_cmp'):
            self.kind = 'valu'
            self.defs = set(R[0]); self.uses = set(sum(R[1:], []))
            if base.startswith('v_cmpx'): self.defs.add(('s', 'exec'))
        elif base in ('v_readfirstlane_b32', 'v_readlane_b32'):
            self.kind = 'valu'; self.defs = set(R[0]); self.uses = set(sum(R[1:], [])); self.lane_read = True
        elif base.startswith('v_permlane'):
            self.kind = 'valu'; self.defs = set(R[0] + R[1]); self.uses = set(R[0] + R[1]); self.permlane = True
        elif base.startswith('v_add_co') or base.startswith('v_sub_co') or base.startswith('v_addc_co') or base.startswith('v_subb_co'):
            self.kind = 'valu'; self.defs = set(R[0] + R[1]); self.uses = set(sum(R[2:], []))
        elif base.startswith('v_'):
            self.kind = 'valu'; self.defs = set(R[0]); self.uses = set(sum(R[1:], []))
            if base.startswith('v_fmac') or base.startswith('v_mac') or base.startswith('v_dot2c') or base == 'v_writelane_b32' or self.dpp:
                self.uses |= set(R[0])
            if base == 'v_cndmask_b32' and len(ops) == 3: self.uses.add(('s', 'vcc'))
        elif base.startswith('ds_read') or base.startswith('ds_bpermute') or base.startswith('ds_permute') or base.startswith('ds_swizzle'):
            self.kind = 'ds'; self.defs = set(R[0]); self.uses = set(sum(R[1:], []))
        elif base.startswith('ds_'):
            self.kind = 'ds'; self.uses = set(sum(R, []))
        elif base.startswith('buffer_load') or base.startswith('global_load'):
            self.kind = 'vmem'
            if 'lds' in mods.split() or 'lds' in base:
                self.uses = set(sum(R, [])); self.uses.add(('s', 'm0')); self.ldsdma = True
            else:
                self.defs = set(R[0]); self.uses = set(sum(R[1:], []))
        elif base.startswith('buffer_store') or base.startswith('global_store'):
            self.kind = 'vmem'; self.uses = set(sum(R, [])); self.store = True
            if base.startswith('buffer_store'): self.sdata = set(R[0])
            else: self.sdata = set(R[1])
            self.wide = ('x3' in base or 'x4' in base)
        elif base.startswith('buffer_atomic') or base.startswith('global_atomic'):
            self.kind = 'vmem'; self.uses = set(sum(R, []))
            if 'sc0' in mods.split(): self.defs = set(R[0])
        elif base.startswith('buffer_') :
            self.kind = 'vmem'
        elif base == 's_nop':
            self.kind = 'nop'; self.n = int(ops[0], 0) + 1
        elif base.startswith('s_cbranch') or base == 's_branch':
            self.kind = 'branch'; self.target = ops[0]
            if 'vcc' in base: self.uses.add(('s', 'vcc'))
        elif base.startswith('s_cmp') or base.startswith('s_bitcmp'):
            self.kind = 'salu'; self.uses = set(sum(R, []))
        elif base in ('s_waitcnt', 's_barrier', 's_endpgm', 's_setprio', 's_sleep'):
            self.kind = 'ctl'
        elif base.startswith('s_load') or base.startswith('s_memtime') or base.startswith('s_memrealtime'):
            self.kind = 'smem'; self.defs = set(R[0]); self.uses = set(sum(R[1:], []))
        elif base.startswith('s_'):
            self.kind = 'salu'; self.defs = set(R[0]); self.uses = set(sum(R[1:], []))
            if 'saveexec' in base: self.defs.add(('s', 'exec')); self.uses.add(('s', 'exec'))
        else:
            raise ValueError('unknown instruction: ' + text)
    def ws(self):
        if self.kind == 'nop': return self.n
        if self.kind in ('label', 'dir', 'empty'): return 0
        return 1

def vregs(s): return {r for r in s if r[0] in 'va'}
def sregs(s): return {r for r in s if r[0] == 's'}

def need_ws(p, c):
    n = 0
    if p.kind == 'valu':
        vd = vregs(p.defs); sd = sregs(p.defs)
        if vd:
            if c.kind == 'mfma' and vd & c.uses: n = max(n, 2)
            if c.kind == 'valu':
                if getattr(c, 'permlane', False) and vd & c.uses: n = max(n, 2)
                if c.dpp and vd & c.uses: n = max(n, 2)
                if getattr(c, 'lane_read', False) and vd & c.uses: n = max(n, 1)
                if p.base in TRANS and vd & (c.uses | set()) and c.base not in TRANS: n = max(n, 1)
                if p.base in TRANS and vd & c.uses: n = max(n, 1)
        if sd:
            if c.kind == 'valu' and (sd & c.uses):
                n = max(n, 2)
                if getattr(c, 'lane_read', False) or c.base == 'v_writelane_b32': n = max(n, 4)
            if c.kind == 'vmem' and (sd & c.uses): n = max(n, 5)
            if c.kind in ('salu', 'smem') and (sd & c.uses) and ('s', 'exec') not in sd: n = max(n, 1)
            if ('s', 'exec') in sd and c.kind in ('mfma',): n = max(n, 4)
            if ('s', 'exec') in sd and c.kind == 'valu' and (c.dpp): n = max(n, 5)
    if p.kind == 'salu':
        if ('s', 'm0') in p.defs and getattr(c, 'ldsdma', False): n = max(n, 1)
    if p.kind == 'mfma':
        D = set(p.D)
        big = {4: 8, 8: 12}[p.passes]
        if c.kind == 'mfma':
            if D & (set(c.A) | set(c.B)): n = max(n, big)
            if D & set(c.C):
                if c.C != p.D or c.passes != p.passes: n = max(n, {4: 6, 8: 10}[p.passes])
        elif c.kind in ('valu', 'ds', 'vmem'):
            if D & (c.uses | c.defs): n = max(n, big)
        if c.kind == 'valu' and set(p.C) & c.defs: n = max(n, {4: 3, 8: 7}[p.passes])
    if p.kind == 'vmem' and getattr(p, 'store', False) and p.wide:
        if c.kind == 'valu' and p.sdata & c.defs: n = max(n, 2)
        elif c.kind in ('ds', 'vmem', 'mfma') and p.sdata & c.defs: n = max(n, 1)
    return n

WINDOW = 14
def fix_hazards(lines, name='', verbose=True):
    ins = [Ins(l) for l in lines]
    out = []
    nfix = 0
    def required(hist, c):
        dist = 0; need = 0
        for p in reversed(hist):
            r = need_ws(p, c)
            if r > dist: need = max(need, r - dist)
            dist += p.ws()
            if dist >= WINDOW + 8: break
        return need
    hist = []
    for c in ins:
        if c.kind in ('label', 'dir', 'empty'):
            out.append(c); continue
        need = required(hist, c)
        if need > 0:
            nop = Ins(f's_nop {need - 1}')
            out.append(nop); hist.append(nop); nfix += 1
            if verbose: print(f'[haz {name}] inserted s_nop {need-1} before: {c.text.strip()}')
        out.append(c); hist.append(c)
        if c.kind == 'branch' and c.op == 's_branch' or c.op == 's_endpgm': hist = []
        if len(hist) > 64: hist = hist[-64:]
    lab = {c.label: i for i, c in enumerate(out) if c.kind == 'label'}
    for i, c in enumerate(out):
        if c.kind == 'branch' and c.target in lab:
            h = [x for x in out[max(0, i - 40):i + 1] if x.kind not in ('label', 'dir', 'empty')]
            j = lab[c.target]
            cnt = 0
            for t in out[j:j + 60]:
                if t.kind in ('label', 'dir', 'empty'): continue
                need = required(h, t)
                if need > 0:
                    raise RuntimeError(f'[haz {name}] hazard across branch {c.text.strip()} -> {t.text.strip()} needs {need} more')
                h.append(t); cnt += t.ws()
                if cnt > WINDOW + 8 or t.kind == 'branch' and t.op == 's_branch': break
    return [c.text for c in out], nfix

class Counter:
    def __init__(self): self.q = []
    def issue(self, tag, n=1):
        for _ in range(n): self.q.append(tag)
    def count_after(self, tag):
        for i in range(len(self.q) - 1, -1, -1):
            if self.q[i] == tag: return len(self.q) - 1 - i
        return None

class Kern:
    def __init__(self, name):
        self.name = name; self.L = []
    def e(self, s):
        for l in s.split('\n'):
            l = l.strip()
            if l: self.L.append(l)
    def label(self, l): self.L.append(f'{l}:')
    stamps = False
    sv = 250
    def stamp(self, i):
        if not Kern.stamps: return
        self.e(f's_memrealtime s[68:69]\ns_memtime s[66:67]\ns_waitcnt lgkmcnt(0)\ns_mov_b32 s{70+i}, s68\ns_mov_b32 s{82+i}, s66')
        self.nst = max(getattr(self, 'nst', 0), i + 1)
        if not hasattr(self, 'used_stamps'): self.used_stamps = set()
        self.used_stamps.add(i)
    def flush_stamps(self, wave_sgpr):
        if not Kern.stamps: return
        self.e(f's_load_dwordx2 s[66:67], s[0:1], 104\ns_waitcnt lgkmcnt(0)')
        self.e(f's_add_u32 s66, s66, {hex(0x8000000 + self.kidx*0x20000)}\ns_addc_u32 s67, s67, 0')
        self.e(f's_lshl_b32 s68, s2, 9\ns_lshl_b32 s69, s{wave_sgpr}, 7\ns_add_u32 s68, s68, s69\nv_mov_b32 v{self.sv}, s68')
        for i in sorted(self.used_stamps):
            self.e(f'v_mov_b32 v{self.sv+1}, s{70+i}')
            self.e(f'global_store_dword v{self.sv}, v{self.sv+1}, s[66:67] offset:{4*i}')
            self.e('s_nop 0')
            self.e(f'v_mov_b32 v{self.sv+1}, s{82+i}')
            self.e(f'global_store_dword v{self.sv}, v{self.sv+1}, s[66:67] offset:{64+4*i}')
            self.e('s_nop 0')
    def finish(self, vgpr, agpr, sgpr=96, verbose=True):
        if Kern.stamps:
            sgpr = 100
            if vgpr < self.sv + 2: vgpr = self.sv + 2
        body, nfix = fix_hazards(self.L, self.name, verbose)
        acc = (vgpr + 3) // 4 * 4
        total = acc + agpr if agpr else vgpr
        hdr = f'.text\n.globl {self.name}\n.p2align 8\n.type {self.name},@function\n{self.name}:\n'
        kd = f'''.section .rodata,"a"
.p2align 6
.amdhsa_kernel {self.name}
  .amdhsa_next_free_vgpr {total}
  .amdhsa_next_free_sgpr {sgpr}
  .amdhsa_accum_offset {acc}
  .amdhsa_group_segment_fixed_size 0
  .amdhsa_kernarg_size 112
  .amdhsa_user_sgpr_count 2
  .amdhsa_user_sgpr_kernarg_segment_ptr 1
  .amdhsa_system_sgpr_workgroup_id_x 1
  .amdhsa_float_denorm_mode_32 3
.end_amdhsa_kernel
'''
        return hdr + '\n'.join(body) + '\n' + kd
```

```python
from common import *
from sched import *

T_THRESH = 80.0

def kern_attn(opts=None):
    opts = opts or {}
    name = opts.get('name', 'attn_kernel')
    k = Kern(name); k.kidx = opts.get('kidx', 0)
    KA = 8; VA = 12; KD = 20; VD = 24; WD = 26; AV = 30
    NEGM = 36
    MX = 52
    FF = 56
    TMP = 60
    S = [64, 128]
    QACC = 64
    aO = 0; aQ = 128; aL = 192; aONE = 208; aFR = 212
    KSLOT = lambda n: (n & 3) * 16384
    VSLOT = lambda n: ((n + 2) & 3) * 16384
    k.e(f's_cmp_ge_u32 s2, 256\ns_cbranch_scc1 L_{name}_end')
    k.e(f's_load_dwordx2 s[4:5], s[0:1], {A_WS}')
    k.e(f's_load_dwordx2 s[6:7], s[0:1], {A_WQ}')
    k.e(f's_load_dwordx2 s[8:9], s[0:1], {A_K}')
    k.e(f's_load_dwordx2 s[10:11], s[0:1], {A_V}')
    PF = opts.get('pf', True)
    if PF:
        k.e(f's_load_dwordx2 s[48:49], s[0:1], {A_WO}')
        k.e(f's_load_dwordx2 s[54:55], s[0:1], {A_WG}')
        k.e(f's_load_dwordx2 s[56:57], s[0:1], {A_WU}')
        k.e(f's_load_dwordx2 s[58:59], s[0:1], {A_WD}')
    k.stamp(0)
    k.e('v_lshrrev_b32 v2, 6, v0')
    k.e('v_and_b32 v1, 63, v0')
    k.e('v_readfirstlane_b32 s32, v2')
    k.e('s_and_b32 s37, s2, 7\ns_lshl_b32 s37, s37, 2\ns_lshr_b32 s38, s2, 6\ns_add_u32 s37, s37, s38')
    k.e('s_lshr_b32 s38, s2, 3\ns_and_b32 s38, s38, 7')
    k.e('s_lshl_b32 s35, s32, 12')
    k.e('v_lshrrev_b32 v4, 4, v1')
    k.e('v_and_b32 v5, 15, v1')
    k.e('v_lshlrev_b32 v3, 4, v1')
    k.e('v_xor_b32 v6, v4, v5\nv_lshlrev_b32 v6, 4, v6\nv_lshl_add_u32 v6, v5, 8, v6')
    for s in range(4): k.e(f'v_xor_b32 v{KA+s}, {s*64}, v6')
    k.e('v_bfe_u32 v6, v1, 2, 2')
    k.e('v_lshl_add_u32 v6, v4, 2, v6')
    k.e('v_and_b32 v7, 7, v6')
    k.e('v_lshlrev_b32 v7, 5, v7\nv_lshl_add_u32 v7, v6, 8, v7')
    k.e('v_and_b32 v6, 3, v1\nv_lshl_add_u32 v7, v6, 3, v7')
    k.e('v_add_u32 v7, 0x8000, v7')
    for db in range(8): k.e(f'v_xor_b32 v{VA+db}, {db*32}, v7')
    for n in range(4):
        k.e(f'v_add_u32 v6, {4*n}, v4')
        k.e('v_xor_b32 v7, v5, v6\nv_lshlrev_b32 v7, 4, v7')
        k.e(f'v_lshl_add_u32 v{KD+n}, v4, 8, v7')
    for n in range(2):
        k.e(f'v_add_u32 v6, {4*n}, v4')
        k.e('v_lshrrev_b32 v7, 1, v5\nv_xor_b32 v7, v7, v6\nv_lshlrev_b32 v7, 5, v7')
        k.e('v_and_b32 v6, 1, v5\nv_lshl_add_u32 v7, v6, 4, v7')
        k.e(f'v_lshl_add_u32 v{VD+n}, v4, 8, v7')
    for n in range(4):
        k.e(f'v_lshlrev_b32 v6, 8, v4\nv_sub_u32 v7, v{VD+(n&1)}, v6')
        k.e(f'v_add_u32 v6, {4*n}, v4\nv_lshl_add_u32 v7, v6, 13, v7')
        k.e(f'v_subrev_u32 v{WD+n}, {1024*n}, v7')
    k.e(f'v_mov_b32 v{AV}, v3')
    for i in range(1, 4): k.e(f'v_add_u32 v{AV+i}, {i*32768}, v3')
    k.e('s_lshl_b32 s33, s38, 4\ns_lshl_b32 s39, s32, 2\ns_add_u32 s33, s33, s39\ns_lshl_b32 s33, s33, 15')
    k.e('s_lshl_b32 s34, s32, 17\ns_lshl_b32 s39, s37, 8\ns_add_u32 s34, s34, s39')
    k.e('s_waitcnt lgkmcnt(0)')
    srd(k, 12, 4, 5, SZ_ACTV, WS_H1)
    srd(k, 16, 6, 7, 1024*4096*2)
    k.e('s_lshl_b32 s39, s37, 19\ns_add_u32 s39, s39, s35')
    k.e('s_add_u32 s20, s8, s39\ns_addc_u32 s21, s9, 0')
    k.e('s_sub_u32 s22, 0x80000, s35\ns_mov_b32 s23, 0x20000')
    k.e('s_add_u32 s24, s10, s39\ns_addc_u32 s25, s11, 0')
    k.e('s_mov_b32 s26, s22\ns_mov_b32 s27, 0x20000')
    srd(k, 28, 4, 5, 2048*4096*2, WS_O)
    if PF:
        k.e('s_mov_b32 s50, 0x800000\ns_mov_b32 s51, 0x20000')
        k.e('s_lshl_b32 s60, s2, 2\ns_add_u32 s60, s60, s32\ns_lshl_b32 s60, s60, 10\ns_mov_b32 s52, s60\ns_mov_b32 s53, 0')
    k.e(f's_mov_b32 s46, {f32(T_THRESH)}')
    k.e('s_mov_b32 s45, 0')
    KVF = opts.get('kvflag', '')
    em = Emitter(k)
    def emit_now(lst):
        for it in lst: em.emit(it)
    def dmaK(n, soff, rel=0, dl=10**9, st='dma'):
        out = [light(f's_add_u32 m0, s35, {KSLOT(n)}', rel, dl, st)]
        for p in range(4): out.append(vmem(f'buffer_load_dwordx4 v{KD+p}, s[20:23], {soff} offen offset:{1024*p} {KVF}lds', ('K', n), rel, dl, st))
        return out
    def dmaV(n, soff, rel=0, dl=10**9, st='dma'):
        out = [light(f's_add_u32 m0, s35, {65536 + VSLOT(n)}', rel, dl, st)]
        for p in range(4): out.append(vmem(f'buffer_load_dwordx4 v{VD+(p&1)}, s[24:27], {soff} offen offset:{1024*p} {KVF}lds', ('V', n), rel, dl, st))
        return out
    def dmaW(s, rel=0, dl=10**9, st='dma'):
        out = [light(f's_add_u32 m0, s35, {32768 + (s & 3)*16384}', rel, dl, st)]
        for p in range(4): out.append(vmem(f'buffer_load_dwordx4 v{WD+p}, s[16:19], s34 offen offset:{1024*p} lds', ('W', s), rel, dl, st))
        out.append(light(f's_add_u32 s34, s34, {64*8192}', rel, dl, st))
        return out
    def loadH(s, rel=0, dl=10**9):
        out = []; st = 'vmH'
        for kk in range(2):
            for i in range(4):
                b = aO + 32*(s % 4) + 16*kk + 4*i
                out.append(vmem(f'buffer_load_dwordx4 a[{b}:{b+3}], v{AV+i}, s[12:15], s33 offen offset:{kk*1024}', ('H', s), rel, dl, st))
        out.append(light('s_add_u32 s33, s33, 2048', rel, dl, st))
        return out
    def rdW(gi, rel=0, dl=10**9):
        s, db = divmod(gi, 8)
        buf = aFR + 8*(gi % 4)
        base = (s & 3)*16384
        return [dsr(f'ds_read_b64_tr_b16 a[{buf+4*kk+2*t}:{buf+4*kk+2*t+1}], v{VA+db} offset:{base + kk*8192 + t*4096}', ('R', gi), rel, dl, 'ds') for kk in range(2) for t in range(2)]
    HD = opts.get('HD', 3)
    PDW = 2
    emit_now(dmaW(0)); emit_now(loadH(0))
    em.emit(wait(wvm=('W', 0)))
    k.e('s_barrier')
    k.stamp(1)
    for gi in range(PDW): emit_now(rdW(gi))
    def qsegment(g0, g1, NG, NS, extra=None, first=False):
        mf = []; pinned = {}; items = []
        if first:
            items += spread(dmaW(1) + dmaW(2), 1, 2, 1)
            hl = []
            for s in range(1, HD): hl += loadH(s)
            items += spread(hl, 2, 2, 1)
        for gi in range(g0, g1):
            s, db = divmod(gi, 8)
            m0 = 8*(gi - g0)
            pin = [wait(wvm=('H', s) if db == 0 else None, wlg=('R', gi))]
            nxt = gi + PDW
            if nxt < NG:
                if nxt % 8 == 0: pin += [wait(wvm=('W', nxt // 8)), It('s_barrier', 4, 'light')]
                items += rdW(nxt, rel=m0, dl=m0 + 7)
            pinned[m0] = pin
            if db == 0:
                if s + HD < NS: items += spread(loadH(s + HD), m0 + (2 if not (first and s == 0) else 36), 5 if not (first and s == 0) else 2)
                if s + 3 < NS: items += spread(dmaW(s + 3), m0 + 8*(8 - PDW) + 1, 4, 2)
                if extra and (s in extra): items += extra[s](m0)
            buf = aFR + 8*(gi % 4)
            for qb in range(4):
                for kk in range(2):
                    acc = QACC + (db*4 + qb)*4
                    hb = aO + 32*(s % 4) + 16*kk + 4*qb
                    c = '0' if (first and s == 0 and kk == 0) else f'v[{acc}:{acc+3}]'
                    mf.append(f'v_mfma_f32_16x16x32_bf16 v[{acc}:{acc+3}], a[{buf+4*kk}:{buf+4*kk+3}], a[{hb}:{hb+3}], {c}')
        return schedule(em, mf, pinned, items, verbose=opts.get('verbose', False), vm_space=3)
    BIG = 10**9
    qsegment(0, 32, BIG, BIG, first=True)
    if opts.get('fine'): k.stamp(8)
    k.e('s_mov_b32 s36, 2')
    emit_loop(k, f'L_{name}_qloop', lambda t: qsegment(32*(t+1), 32*(t+2), BIG, BIG))
    k.e(f's_sub_u32 s36, s36, 1\ns_cmp_lg_u32 s36, 0\ns_cbranch_scc1 L_{name}_qloop')
    if opts.get('fine'): k.stamp(9)
    k.e('s_mov_b32 s44, 0\ns_mov_b32 s47, 16384')
    extras = {13: lambda m0: spread(dmaK(0, 's44') + dmaV(0, 's44'), m0 + 4, 7),
              14: lambda m0: spread(dmaK(1, 's47') + dmaV(1, 's47'), m0 + 4, 7)}
    qsegment(96, 128, 128, 16, extras)
    k.stamp(2)
    for qb in range(4):
        for s in range(4):
            t = TMP
            a0 = QACC + ((2*s)*4 + qb)*4; b0 = QACC + ((2*s+1)*4 + qb)*4
            t = 192 + 4*((qb*4+s) % 8)
            k.e(f'v_cvt_pk_bf16_f32 v{t}, v{a0}, v{a0+1}')
            k.e(f'v_cvt_pk_bf16_f32 v{t+1}, v{a0+2}, v{a0+3}')
            k.e(f'v_cvt_pk_bf16_f32 v{t+2}, v{b0}, v{b0+1}')
            k.e(f'v_cvt_pk_bf16_f32 v{t+3}, v{b0+2}, v{b0+3}')
            k.e('s_nop 1')
            k.e(f'v_permlane32_swap_b32 v{t}, v{t+2}\nv_permlane32_swap_b32 v{t+1}, v{t+3}')
            k.e('s_nop 1')
            k.e(f'v_permlane16_swap_b32 v{t}, v{t+2}\nv_permlane16_swap_b32 v{t+1}, v{t+3}')
            q = aQ + (qb*4 + s)*4
            for u in range(4): k.e(f'v_accvgpr_write_b32 a{q+u}, v{t+u}')
    for db in range(8): k.e(f'v_add_u32 v{VA+db}, 0x8000, v{VA+db}')
    for i in range(128): k.e(f'v_accvgpr_write_b32 a{aO+i}, 0')
    for i in range(16): k.e(f'v_accvgpr_write_b32 a{aL+i}, 0')
    k.e('v_mov_b32 v2, 0x3f803f80')
    for i in range(4): k.e(f'v_accvgpr_write_b32 a{aONE+i}, v2')
    k.e('s_waitcnt vmcnt(0)')
    k.e('s_barrier')
    em.vm.q = []; em.lg.q = []
    k.stamp(3)
    k.e('s_mov_b32 s47, 32768')
    emit_now(dmaK(2, 's47'))
    def rdK(n, kb, rel=0, dl=10**9):
        return [dsr(f'ds_read_b128 a[{aFR + 16*(kb & 1) + 4*s}:{aFR + 16*(kb & 1) + 4*s + 3}], v{KA+s} offset:{KSLOT(n) + kb*4096}', ('RK', n, kb), rel, dl, 'ds') for s in range(4)]
    def rdV(n, db, rel=0, dl=10**9):
        out = []
        for ks2 in range(2):
            buf = aFR + 8*(db & 3) + 4*ks2
            for t in range(2):
                out.append(dsr(f'ds_read_b64_tr_b16 a[{buf+2*t}:{buf+2*t+1}], v{VA+db} offset:{VSLOT(n) + (32*ks2 + 16*t)*256}', ('RV', n, db), rel, dl, 'ds'))
        return out
    def Sreg(n, kb, qb):
        return S[n & 1] + (qb*2 + (kb >> 1))*8 + (kb & 1)*4
    def qk_mfma(n, kb, qb, s, czero=False):
        d = Sreg(n, kb, qb); buf = aFR + 16*(kb & 1) + 4*s; q = aQ + (qb*4 + s)*4
        if s == 0: c = '0' if czero else f'v[{NEGM+4*qb}:{NEGM+4*qb+3}]'
        else: c = f'v[{d}:{d+3}]'
        return f'v_mfma_f32_16x16x32_bf16 v[{d}:{d+3}], a[{buf}:{buf+3}], a[{q}:{q+3}], {c}'
    def pv_mfma(n, db, qb, ks2):
        o = aO + (db*4 + qb)*4; buf = aFR + 8*(db & 3) + 4*ks2; p = S[n & 1] + (qb*2 + ks2)*8
        return f'v_mfma_f32_16x16x32_bf16 a[{o}:{o+3}], a[{buf}:{buf+3}], v[{p}:{p+3}], a[{o}:{o+3}]'
    def sum_mfma(n, qb, ks2):
        l = aL + 4*qb; p = S[n & 1] + (qb*2 + ks2)*8
        return f'v_mfma_f32_16x16x32_bf16 a[{l}:{l+3}], a[{aONE}:{aONE+3}], v[{p}:{p+3}], a[{l}:{l+3}]'
    def max_ops(n, qb):
        vals = [Sreg(n, kb, qb) + r for kb in range(4) for r in range(4)]
        m = MX + qb
        ops = [(0, f'v_max3_f32 v{m}, v{vals[0]}, v{vals[1]}, v{vals[2]}')]
        for i in range(1, 7): ops.append(((2*i+2)//4, f'v_max3_f32 v{m}, v{m}, v{vals[2*i+1]}, v{vals[2*i+2]}'))
        ops.append((3, f'v_max_f32 v{m}, v{m}, v{vals[15]}'))
        return ops
    def EC(n, u, rel, dl, deps):
        qb, ks2 = u >> 1, u & 1
        b = S[n & 1] + (qb*2 + ks2)*8
        es = [It(f'v_exp_f32 v{b+r}, v{b+r}', 8, 'light', None, rel, dl, deps, 'E') for r in range(8)]
        cs = [It(f'v_cvt_pk_bf16_f32 v{b+u2}, v{b+2*u2}, v{b+2*u2+1}', 4, 'light', None, rel, dl + 2, [es[2*u2+1]], 'C') for u2 in range(4)]
        return es + cs
    rare_sites = []; resc_sites = []
    def check_items(n, tag, mitems, rel):
        lab = f'L_{name}_rare_{tag}'; back = f'L_{name}_back_{tag}'
        rare_sites.append((n, lab, back))
        c1 = It(f'v_max3_f32 v{TMP}, v{MX}, v{MX+1}, v{MX+2}', 4, 'light', None, rel, rel + 6, mitems, 'M')
        c2 = It(f'v_max_f32 v{TMP}, v{TMP}, v{MX+3}', 4, 'light', None, rel, rel + 7, [], 'M')
        c3 = It(f'v_cmp_lt_f32 vcc, s46, v{TMP}\ns_cbranch_vccnz {lab}\n{back}:', 8, 'light', None, rel, rel + 8, [c2], 'M')
        c1.hard = 76; c2.hard = 77; c3.hard = 78
        return [c1, c2, c3]
    def pend_item(tag, rel):
        lab = f'L_{name}_resc_{tag}'; back = f'L_{name}_rback_{tag}'
        resc_sites.append((lab, back))
        x = It(f's_cmp_lg_u32 s45, 0\ns_cbranch_scc1 {lab}\n{back}:', 8, 'light', None, rel, rel + 6, [], 'pend'); x.hard = 58
        return x
    def step2(lst, rel, step=2, hard=None):
        for i, it in enumerate(lst):
            it.rel = rel; it.dl = rel + step*i + 1; it.hard = hard
        return lst
    NUY = opts.get('NUY', 4)
    def iteration(j, nt_last=None, tag=''):
        hasX = (nt_last is None or j + 1 <= nt_last)
        hasNextX = (nt_last is None or j + 2 <= nt_last)
        tg = tag + f'_{j & 3}'
        mf = []; pinned = {}; items = []
        n = j + 1
        off = 0
        if hasX:
            for kb in range(4):
                for qb in range(4):
                    for s in range(4): mf.append(qk_mfma(n, kb, qb, s))
                pinned[16*kb] = [wait(wlg=('RK', n, kb))]
            items += step2(rdK(n, 1), 0, hard=9) + step2(rdK(n, 2), 15, hard=25) + step2(rdK(n, 3), 31, hard=41)
            items += step2(rdV(j, 0), 47, hard=64) + step2(rdV(j, 1), 55, hard=72)
            for it in items[-4:]: it.rel = 47
            items.append(pend_item(tg, 1))
            dm = []
            DL = 116
            if nt_last is None or j + 3 <= nt_last: dm += dmaK(j + 3, 's44', 2, DL)
            if nt_last is None or j + 2 <= nt_last: dm += dmaV(j + 2, 's47', 2, DL)
            if PF: dm += [vmem('buffer_load_dwordx4 v[192:195], v3, s[48:51], s52 offen', ('P', j), 2, DL, 'dma'), light('s_add_u32 s52, s52, 0x100000', 2, DL + 8, 'dma')]
            dm += [light('s_add_u32 s44, s44, 16384', 2, DL + 9, 'dma'), light('s_add_u32 s47, s47, 16384', 2, DL + 10, 'dma')]
            dm = spread(dm, opts.get('vst', 6), opts.get('vms', 12))
            for it in dm: it.hard = 118 if it.kind == 'vmem' else 134; it.rel = max(2, it.rel - 8)
            items += dm
            ee = []
            for u in range(NUY, 8): ee += EC(j, u, 0, 60, [])
            es = [x for x in ee if x.stream == 'E']; pace(es, 0, 60)
            for x in ee:
                if x.stream == 'C': x.dl = min(62, x.deps[0].dl + 4); x.hard = 63
                else: x.hard = 62
            items += ee
            mitems = []
            MDL = [14, 26, 34, 44, 52, 62, 66, 69]
            for i in range(8):
                for qb in range(4):
                    kbn, txt = max_ops(n, qb)[i]
                    r0 = 16*kbn + 4*qb + 3 + 3
                    it = It(txt, 4, 'light', None, r0, max(r0 + 3, MDL[i] + qb), [], 'M'); it.hard = 74
                    mitems.append(it)
            items += mitems
            off = 64
        else:
            for u in range(NUY, 8):
                for it in EC(j, u, 0, 0, []): em.emit(it)
            em.emit(pend_item(tg, 0))
            emit_now(rdV(j, 0) + rdV(j, 1))
        for qb in range(4):
            for ks2 in range(2): mf.append(sum_mfma(j, qb, ks2))
        for db in range(8):
            m0 = off + 8 + 8*db
            for qb in range(4):
                for ks2 in range(2): mf.append(pv_mfma(j, db, qb, ks2))
            pinned.setdefault(m0, []).append(wait(wlg=('RV', j, db)))
            if db + 4 < 8: items += step2(rdV(j, db + 4), m0 + 7, hard=m0 + 24)
        items += step2(rdV(j, 2), off - 1 if off else 0, hard=off + 16) + step2(rdV(j, 3), off + 7 if off else 8, hard=off + 24)
        for it in items[-4:]: it.rel = off - 1 if off else 0
        mb = off + 8 + 8*6
        if hasNextX:
            pinned.setdefault(mb, []).extend([wait(wvm=[('K', j + 2), ('V', j + 1)]), It('s_barrier', 4, 'light')])
            items += step2(rdK(j + 2, 0), mb, hard=mb + 9)
        elif hasX:
            pinned.setdefault(mb, []).extend([wait(wvm=[('V', j + 1)]), It('s_barrier', 4, 'light')])
        if hasX:
            chk = check_items(n, tg, mitems, 64)
            items += chk
            ee = []
            for u in range(NUY): ee += EC(n, u, 66, 135, [chk[2]])
            es = [x for x in ee if x.stream == 'E']; pace(es, 72, 134)
            for x in ee:
                if x.stream == 'C': x.dl = min(135, x.deps[0].dl + 4); x.hard = 135
                else: x.hard = 134
            items += ee
        ds = sorted([it for it in items if it.stream == 'ds'], key=lambda it: it.rel)
        items = [it for it in items if it.stream != 'ds'] + ds
        return schedule(em, mf, pinned, items, verbose=opts.get('verbose', False), vm_space=4, optimize=opts.get('opt', 30000))

    emit_now(rdK(0, 0) + rdK(0, 1))
    mf = []; pinned = {}; items = []
    for kb in range(4):
        for qb in range(4):
            for s in range(4): mf.append(qk_mfma(0, kb, qb, s, czero=True))
        pinned[16*kb] = [wait(wlg=('RK', 0, kb))]
    items += rdK(0, 2, 15, 24) + rdK(0, 3, 31, 40) + rdK(1, 0, 47, 56)
    schedule(em, mf, pinned, items)
    k.e('s_nop 7')
    for qb in range(4):
        for _, t in max_ops(0, qb): k.e(t)
    for qb in range(4):
        xor16_sum(k, MX + qb, TMP, 'v_max_f32'); xor32_sum(k, MX + qb, TMP, 'v_max_f32')
    for qb in range(4):
        for r in range(4): k.e(f'v_sub_f32 v{NEGM+4*qb+r}, 0, v{MX+qb}')
        for kb in range(4):
            for r in range(4):
                x = Sreg(0, kb, qb) + r
                k.e(f'v_sub_f32 v{x}, v{x}, v{MX+qb}')
    for u in range(NUY):
        its = EC(0, u, 0, 0, [])
        for it in its[:8]: em.emit(it)
        k.e('s_nop 0')
        for it in its[8:]: em.emit(it)
    k.e('s_mov_b32 s44, 49152\ns_mov_b32 s47, 32768')
    k.stamp(4)
    k.e('s_mov_b32 s36, 7')
    def abody(t):
        nr, ns = len(rare_sites), len(resc_sites)
        for j in range(4*t, 4*t + 4): iteration(j, None, 'a')
        if t > 0:
            del rare_sites[nr:]; del resc_sites[ns:]
    emit_loop(k, f'L_{name}_loop', abody)
    if PF:
        k.e('s_add_u32 s53, s53, 1')
        for idx, sp in ((2, 54), (4, 56), (6, 58)):
            k.e(f's_cmp_eq_u32 s53, {idx}\ns_cselect_b32 s48, s{sp}, s48\ns_cselect_b32 s49, s{sp+1}, s49')
        k.e('s_cmp_ge_u32 s53, 2\ns_cselect_b32 s50, 0x700000, s50')
        k.e('s_bitcmp1_b32 s53, 0\ns_cselect_b32 s52, s52, s60')
    k.e(f's_sub_u32 s36, s36, 1\ns_cmp_lg_u32 s36, 0\ns_cbranch_scc1 L_{name}_loop')
    for j in range(8, 12): iteration(j, 11, 'c')
    k.stamp(5)
    k.e('s_nop 7')
    for qb in range(4):
        k.e(f'v_accvgpr_read_b32 v{MX+qb}, a{aL+4*qb}')
    k.e('s_nop 0')
    for qb in range(4): k.e(f'v_rcp_f32 v{MX+qb}, v{MX+qb}')
    k.e('s_lshl_b32 s39, s38, 4\ns_lshl_b32 s40, s32, 2\ns_add_u32 s39, s39, s40\ns_lshl_b32 s39, s39, 17\ns_lshl_b32 s40, s37, 12\ns_add_u32 s39, s39, s40')
    cnt = 0
    for qb in range(4):
        for s in range(4):
            t = 64 + 16*(cnt % 4); cnt += 1
            for h in range(2):
                o = aO + ((2*s + h)*4 + qb)*4
                for r in range(4): k.e(f'v_accvgpr_read_b32 v{t+4*h+r}, a{o+r}')
            for i in range(8): k.e(f'v_mul_f32 v{t+i}, v{t+i}, v{MX+qb}')
            for u in range(4): k.e(f'v_cvt_pk_bf16_f32 v{t+8+u}, v{t+2*u}, v{t+2*u+1}')
            k.e(f'buffer_store_dwordx4 v[{t+8}:{t+11}], v3, s[28:31], s39 offen offset:{s*1024} {opts.get("stflag", "sc1")}')
        k.e('s_add_u32 s39, s39, 0x20000')
    if Kern.stamps:
        k.stamp(6); k.e('s_waitcnt vmcnt(0)'); k.stamp(7); k.flush_stamps(32)
    k.e('s_endpgm')
    for (n, lab, back) in rare_sites:
        k.label(lab)
        for qb in range(4):
            xor16_sum(k, MX + qb, TMP, 'v_max_f32'); xor32_sum(k, MX + qb, TMP, 'v_max_f32')
        for qb in range(4):
            k.e(f'v_max_f32 v{MX+qb}, 0, v{MX+qb}')
            k.e(f'v_sub_f32 v{TMP}, 0, v{MX+qb}')
            k.e(f'v_exp_f32 v{FF+qb}, v{TMP}')
            for r in range(4): k.e(f'v_sub_f32 v{NEGM+4*qb+r}, v{NEGM+4*qb+r}, v{MX+qb}')
            for kb in range(4):
                for r in range(4):
                    x = Sreg(n, kb, qb) + r
                    k.e(f'v_sub_f32 v{x}, v{x}, v{MX+qb}')
        k.e('s_mov_b32 s45, 1')
        k.e('s_nop 1')
        k.e(f's_branch {back}')
    for (lab, back) in resc_sites:
        k.label(lab)
        k.e('s_nop 7\ns_nop 7')
        for qb in range(4):
            regs_ = [aO + (db*4 + qb)*4 + r for db in range(8) for r in range(4)] + [aL + 4*qb + r for r in range(4)]
            for i in range(0, len(regs_), 4):
                for u in range(4): k.e(f'v_accvgpr_read_b32 v{TMP+u}, a{regs_[i+u]}')
                for u in range(4): k.e(f'v_mul_f32 v{TMP+u}, v{TMP+u}, v{FF+qb}')
                for u in range(4): k.e(f'v_accvgpr_write_b32 a{regs_[i+u]}, v{TMP+u}')
        k.e('s_mov_b32 s45, 0')
        k.e('s_nop 1')
        k.e(f's_branch {back}')
    k.label(f'L_{name}_end')
    k.e('s_endpgm')
    return k.finish(vgpr=256, agpr=256, sgpr=64)
```

```python
from common import *
from sched import *

def kern_gateup(opts=None):
    opts = opts or {}
    name = opts.get('name', 'gateup_kernel')
    k = Kern(name); k.kidx = opts.get('kidx', 0)
    STG = 28672; REG = 14336
    AV = 8
    WV = 12
    TR = 20
    WF = 168
    ACT = 40
    k.e(f's_cmp_ge_u32 s2, 256\ns_cbranch_scc1 L_{name}_end')
    k.e(f's_load_dwordx2 s[4:5], s[0:1], {A_WS}')
    k.e(f's_load_dwordx2 s[6:7], s[0:1], {A_WG}')
    k.e(f's_load_dwordx2 s[8:9], s[0:1], {A_WU}')
    k.stamp(0)
    k.e('v_lshrrev_b32 v2, 6, v0')
    k.e('v_and_b32 v1, 63, v0')
    k.e('v_readfirstlane_b32 s32, v2')
    k.e('s_and_b32 s37, s2, 7\ns_lshr_b32 s38, s2, 3')
    k.e('s_lshl_b32 s40, s37, 2\ns_and_b32 s41, s38, 3\ns_add_u32 s40, s40, s41')
    k.e('s_lshr_b32 s39, s38, 2')
    k.e('v_lshlrev_b32 v3, 4, v1')
    k.e(f'v_mov_b32 v{AV}, v3')
    for i in range(1, 4): k.e(f'v_add_u32 v{AV+i}, {i*32768}, v3')
    k.e('s_lshl_b32 s33, s39, 4\ns_lshl_b32 s42, s32, 2\ns_add_u32 s33, s33, s42\ns_lshl_b32 s33, s33, 15')
    for n in range(7):
        k.e(f'v_add_u32 v4, {64*n}, v1')
        k.e('v_mul_u32_u24 v5, 4682, v4\nv_lshrrev_b32 v5, 16, v5')
        k.e('v_mul_u32_u24 v6, 14, v5\nv_sub_u32 v6, v4, v6')
        k.e('v_mul_u32_u24 v5, 7168, v5\nv_lshl_add_u32 v5, v6, 4, v5')
        k.e(f'v_subrev_u32 v{WV+n}, {1024*(n&3)}, v5')
    k.e('s_and_b32 s42, s32, 1\ns_mul_i32 s34, s42, 229376\ns_mul_i32 s43, s40, 224\ns_add_u32 s34, s34, s43')
    k.e(f's_lshr_b32 s43, s32, 1\ns_mul_i32 s35, s43, {REG}\ns_mul_i32 s42, s42, 7168\ns_add_u32 s35, s35, s42')
    k.e('v_lshrrev_b32 v4, 4, v1\nv_bfe_u32 v5, v1, 2, 2\nv_lshl_add_u32 v5, v4, 2, v5')
    k.e('v_mul_u32_u24 v5, 224, v5\nv_and_b32 v6, 3, v1')
    k.e(f'v_lshl_add_u32 v{TR}, v6, 3, v5')
    k.e(f'v_add_u32 v{TR+1}, {2*STG}, v{TR}')
    k.e('s_waitcnt lgkmcnt(0)')
    srd(k, 12, 4, 5, SZ_ACTV, WS_H2)
    k.e('s_cmp_lt_u32 s32, 2')
    k.e('s_cselect_b32 s16, s6, s8\ns_cselect_b32 s17, s7, s9')
    k.e(f's_mov_b32 s18, {1024*3584*2}\ns_mov_b32 s19, 0x20000')
    srd(k, 20, 4, 5, 2048*3584*2, WS_ACT)
    em = Emitter(k)
    def emit_now(lst):
        for it in lst: em.emit(it)
    def dma(s):
        slot = s % 4; st = 'dma'
        out = []
        for n in range(7):
            if n % 4 == 0:
                out.append(light(f's_add_u32 m0, s35, {slot*STG + 4096*(n//4)}', stream=st))
            if opts.get('noW'): continue
            out.append(vmem(f'buffer_load_dwordx4 v{WV+n}, s[16:19], s34 offen offset:{1024*(n&3)} lds', ('W', s), stream=st))
        out.append(light(f's_add_u32 s34, s34, {64*7168}', stream=st))
        return out
    def actl(s):
        out = []; st = 'vmA'
        for kk in range(2):
            for i in range(4):
                b = ACT + 32*(s % 4) + 16*kk + 4*i
                if opts.get('noA'): continue
                out.append(vmem(f'buffer_load_dwordx4 v[{b}:{b+3}], v{AV+i}, s[12:15], s33 offen offset:{kk*1024}', ('A', s), stream=st))
        out.append(light('s_add_u32 s33, s33, 2048', stream=st))
        return out
    def rd(gi, rel=0, dl=10**9):
        s, j = divmod(gi, 14)
        slot = s % 4
        b = j // 2; reg = j & 1
        buf = WF + 8*(gi % 4)
        a = TR + (slot >> 1)
        out = []
        for kk in range(2):
            base = (slot & 1) * STG + reg * REG + kk * 7168 + b * 32
            for t in range(2):
                out.append(dsr(f'ds_read_b64_tr_b16 v[{buf+4*kk+2*t}:{buf+4*kk+2*t+1}], v{a} offset:{base + t*3584}', ('R', gi), rel, dl, 'ds'))
        return out
    AD = opts.get('AD', 2); PD = 2
    emit_now(dma(0)); emit_now(actl(0))
    em.emit(wait(wvm=('W', 0)))
    k.e('s_barrier')
    k.stamp(1)
    for gi in range(PD): emit_now(rd(gi))
    def segment(g0, g1, NG, NS, first=False):
        mf = []; pinned = {}; items = []
        if first:
            items += spread(dma(1) + dma(2), 1, 3, 1)
            for s in range(1, AD): items += spread(actl(s), 2, 3, 1)
        for gi in range(g0, g1):
            s, j = divmod(gi, 14)
            m0 = 8*(gi - g0)
            pin = [wait(wvm=('A', s) if j == 0 else None, wlg=('R', gi))]
            nxt = gi + PD
            if nxt < NG:
                if nxt % 14 == 0: pin += [wait(wvm=('W', nxt // 14)), It('s_barrier', 4, 'light')]
                items += rd(nxt, rel=m0, dl=m0 + 7)
            pinned[m0] = pin
            if j == 0:
                if s + AD < NS: items += spread(actl(s + AD), m0 + (2 if not (first and s == 0) else 50), 7 if not (first and s == 0) else 5)
                if s + 3 < NS: items += spread(dma(s + 3), m0 + 8*(14 - PD) - 40 if False else m0 + 8*(14 - PD) + 1, 2, 1) if False else []
            if j == 0 and s + 3 < NS:
                pass
            b = j // 2; reg = j & 1
            buf = WF + 8*(gi % 4)
            for i in range(4):
                for kk in range(2):
                    acc = ((reg * 7 + b) * 4 + i) * 4
                    ab = ACT + 32*(s % 4) + 16*kk + 4*i
                    c = '0' if (first and s == 0 and kk == 0) else f'a[{acc}:{acc+3}]'
                    mf.append(f'v_mfma_f32_16x16x32_bf16 a[{acc}:{acc+3}], v[{buf+4*kk}:{buf+4*kk+3}], v[{ab}:{ab+3}], {c}')
        for s in range(g0 // 14, g1 // 14):
            m0 = 8*(14*s - g0)
            if s + 3 < NS: items += spread(dma(s + 3), m0 + 60, 7)
        return schedule(em, mf, pinned, items, verbose=opts.get('verbose', False), vm_space=3)
    BIG = 10**9
    segment(0, 56, BIG, BIG, first=True)
    if opts.get('fine'): k.stamp(5)
    k.e('s_mov_b32 s36, 2')
    emit_loop(k, f'L_{name}_loop', lambda t: segment(56*(t+1), 56*(t+2), BIG, BIG))
    k.e('s_sub_u32 s36, s36, 1\ns_cmp_lg_u32 s36, 0')
    k.e(f's_cbranch_scc1 L_{name}_loop')
    if opts.get('fine'): k.stamp(6)
    segment(168, 224, 224, 16)
    k.stamp(2)
    k.e(f's_lshl_b32 s33, s39, 4\ns_lshl_b32 s42, s32, 2\ns_add_u32 s33, s33, s42\ns_mul_i32 s33, s33, {112*1024}')
    k.e('s_mul_i32 s41, s40, 7\ns_lshr_b32 s41, s41, 1\ns_lshl_b32 s41, s41, 10\ns_add_u32 s33, s33, s41')
    k.e(f'v_mov_b32 v{AV}, v3')
    for i in range(1, 4): k.e(f'v_add_u32 v{AV+i}, {i*112*1024}, v3')
    k.e(f's_mov_b32 s52, {f32(-1.4426950408889634)}\ns_mov_b32 s53, s52')
    k.e('s_mov_b32 s54, 1.0\ns_mov_b32 s55, 1.0')
    PK = opts.get('pk', True)
    cnt = [0]
    def block(b, i, t, dst):
        g = ((0 * 7 + b) * 4 + i) * 4; u = ((1 * 7 + b) * 4 + i) * 4
        for r in range(4): k.e(f'v_accvgpr_read_b32 v{t+r}, a{g+r}')
        for r in range(4): k.e(f'v_accvgpr_read_b32 v{t+4+r}, a{u+r}')
        if PK:
            for r in (0, 2): k.e(f'v_pk_mul_f32 v[{t+8+r}:{t+9+r}], v[{t+r}:{t+r+1}], s[52:53]')
        else:
            for r in range(4): k.e(f'v_mul_f32 v{t+8+r}, s52, v{t+r}')
        for r in range(4): k.e(f'v_exp_f32 v{t+8+r}, v{t+8+r}')
        if PK:
            for r in (0, 2): k.e(f'v_pk_mul_f32 v[{t+r}:{t+r+1}], v[{t+r}:{t+r+1}], v[{t+4+r}:{t+5+r}]')
            for r in (0, 2): k.e(f'v_pk_add_f32 v[{t+8+r}:{t+9+r}], v[{t+8+r}:{t+9+r}], s[54:55]')
        else:
            for r in range(4): k.e(f'v_mul_f32 v{t+r}, v{t+r}, v{t+4+r}')
            for r in range(4): k.e(f'v_add_f32 v{t+8+r}, 1.0, v{t+8+r}')
        for r in range(4): k.e(f'v_rcp_f32 v{t+8+r}, v{t+8+r}')
        k.e('s_nop 0')
        if PK:
            for r in (0, 2): k.e(f'v_pk_mul_f32 v[{t+r}:{t+r+1}], v[{t+r}:{t+r+1}], v[{t+8+r}:{t+9+r}]')
        else:
            for r in range(4): k.e(f'v_mul_f32 v{t+r}, v{t+r}, v{t+8+r}')
        k.e(f'v_cvt_pk_bf16_f32 v{dst}, v{t}, v{t+1}')
        k.e(f'v_cvt_pk_bf16_f32 v{dst+1}, v{t+2}, v{t+3}')
    def variant(par):
        units = []
        b = 0
        while b < 7:
            if (par + b) % 2 == 0 and b + 1 < 7: units.append((b, b + 1)); b += 2
            else: units.append((b,)); b += 1
        for un in units:
            fo = ((par + un[0]) >> 1) * 1024
            for i in range(4):
                t = ACT + 32 * (cnt[0] % 4); cnt[0] += 1
                if len(un) == 2:
                    block(un[0], i, t, t + 24); block(un[1], i, t + 12, t + 26)
                    k.e(f'buffer_store_dwordx4 v[{t+24}:{t+27}], v{AV+i}, s[20:23], s33 offen offset:{fo} {opts.get("stflag", "sc1")}')
                else:
                    block(un[0], i, t, t + 24)
                    half = ((par + un[0]) & 1) * 8
                    k.e(f'buffer_store_dwordx2 v[{t+24}:{t+25}], v{AV+i}, s[20:23], s33 offen offset:{fo + half}')
    k.e(f's_bitcmp1_b32 s40, 0\ns_cbranch_scc1 L_{name}_odd')
    variant(0)
    k.e(f's_branch L_{name}_epidone')
    k.label(f'L_{name}_odd')
    variant(1)
    k.label(f'L_{name}_epidone')
    if Kern.stamps:
        k.stamp(3); k.e('s_waitcnt vmcnt(0)'); k.stamp(4); k.flush_stamps(32)
    k.label(f'L_{name}_end')
    k.e('s_endpgm')
    return k.finish(vgpr=200, agpr=224, sgpr=56)
```

```python
from common import *
from k_prep2 import MODP, MODSZ, bf16_round
from sched import *
WS_XCH = 0x3000000

def kern_gemm2(which, opts=None, suffix=''):
    opts = opts or {}
    name = f'{which}{suffix}_kernel'
    k = Kern(name); k.kidx = opts.get('kidx', 0)
    if which == 'wo':
        KD_, act_off, wptr, gidx = 4096, WS_O, A_WO, 2
    else:
        KD_, act_off, wptr, gidx = 3584, WS_ACT, A_WD, 5
    nks = KD_ // 32
    nst = nks // 4
    AV = 8; WD = 10; VA = 16; WF = 24; ACT = 64; XR = 128; GV = 144; T = 176
    AD = opts.get('AD', 3)
    k.e(f's_cmp_ge_u32 s2, 256\ns_cbranch_scc1 L_{name}_end')
    k.e(f's_load_dwordx2 s[4:5], s[0:1], {A_WS}')
    k.e(f's_load_dwordx2 s[6:7], s[0:1], {wptr}')
    k.e(f's_load_dwordx2 s[8:9], s[0:1], {A_X if which == "wo" else A_OUT}')
    k.e(f's_load_dwordx2 s[10:11], s[0:1], {A_DBG}')
    k.stamp(0)
    k.e('v_lshrrev_b32 v2, 6, v0\nv_and_b32 v1, 63, v0\nv_readfirstlane_b32 s32, v2')
    k.e('s_and_b32 s37, s2, 7\ns_lshr_b32 s38, s2, 3')
    if opts.get('xmap', 1) == 0:
        k.e('s_and_b32 s41, s38, 1')
        k.e('s_lshr_b32 s39, s37, 1\ns_lshl_b32 s39, s39, 2\ns_lshr_b32 s40, s38, 3\ns_add_u32 s39, s39, s40')
        k.e('s_and_b32 s40, s37, 1\ns_lshl_b32 s40, s40, 2\ns_bfe_u32 s42, s38, 0x20001\ns_add_u32 s40, s40, s42')
    else:
        k.e('s_and_b32 s41, s37, 1')
        k.e('s_lshr_b32 s39, s37, 1\ns_lshl_b32 s39, s39, 2\ns_lshr_b32 s40, s38, 3\ns_add_u32 s39, s39, s40')
        k.e('s_and_b32 s40, s38, 7')
    k.e('s_lshl_b32 s44, s39, 3\ns_add_u32 s44, s44, s40')
    k.e('s_lshl_b32 s35, s32, 12')
    k.e('v_lshrrev_b32 v4, 4, v1\nv_and_b32 v5, 15, v1\nv_lshlrev_b32 v3, 4, v1')
    k.e(f'v_mov_b32 v{AV}, v3\nv_add_u32 v{AV+1}, {nks*1024}, v3')
    k.e(f's_lshl_b32 s33, s39, 3\ns_lshl_b32 s42, s32, 1\ns_add_u32 s33, s33, s42\ns_mul_i32 s33, s33, {nks*1024}')
    k.e(f's_mul_i32 s42, s41, {nks*512}\ns_add_u32 s33, s33, s42')
    for n in range(4):
        k.e(f'v_add_u32 v6, {4*n}, v4\nv_and_b32 v7, 7, v6')
        k.e('v_lshrrev_b32 v2, 1, v5\nv_xor_b32 v7, v7, v2\nv_lshlrev_b32 v7, 5, v7')
        k.e('v_and_b32 v2, 1, v5\nv_lshl_add_u32 v7, v2, 4, v7')
        k.e(f'v_lshl_add_u32 v7, v6, 11, v7\nv_subrev_u32 v{WD+n}, {1024*n}, v7')
    k.e(f's_mul_i32 s34, s41, {KD_//2*2048}\ns_lshl_b32 s42, s32, 15\ns_add_u32 s34, s34, s42\ns_lshl_b32 s42, s40, 8\ns_add_u32 s34, s34, s42')
    k.e('v_bfe_u32 v6, v1, 2, 2\nv_lshl_add_u32 v6, v4, 2, v6\nv_and_b32 v7, 7, v6')
    k.e('v_lshlrev_b32 v7, 5, v7\nv_lshl_add_u32 v7, v6, 8, v7\nv_and_b32 v6, 3, v1\nv_lshl_add_u32 v7, v6, 3, v7')
    k.e('s_lshl_b32 s42, s41, 7\nv_xor_b32 v7, s42, v7')
    for nb in range(8): k.e(f'v_xor_b32 v{VA+nb}, {nb*32}, v7')
    k.e('s_waitcnt lgkmcnt(0)')
    srd(k, 12, 4, 5, 2048*KD_*2, act_off)
    srd(k, 16, 6, 7, KD_*2048)
    srd(k, 20, 4, 5, MODSZ, WS_MOD)
    if which == 'wo':
        srd(k, 24, 8, 9, SZ_ACTV); srd(k, 28, 4, 5, SZ_ACTV, WS_X1)
    else:
        srd(k, 24, 4, 5, SZ_ACTV, WS_X1); srd(k, 28, 8, 9, SZ_ACTV)
    srd(k, 48, 4, 5, 0x800000, WS_XCH)
    em = Emitter(k)
    FR = 64
    PD = opts.get('PD', 4)
    def dmaW(s, rel=0, dl=10**9):
        st = 'vmW'
        out = [light(f's_add_u32 m0, s35, {(s & 3)*16384}', rel, dl, st)]
        for p in range(4):
            if opts.get('noW') and s >= 4: continue
            out.append(vmem(f'buffer_load_dwordx4 v{WD+p}, s[16:19], s34 offen offset:{1024*p} lds', ('W', s), rel, dl, st))
        out.append(light(f's_add_u32 s34, s34, {64*2048}', rel, dl, st))
        return out
    def loadA(s, rel=0, dl=10**9):
        st = 'vmA'; out = []
        for kk in range(2):
            for i in range(2):
                b = ACT + 16*(s % 4) + 8*kk + 4*i
                if opts.get('noA') and s >= 4: continue
                out.append(vmem(f'buffer_load_dwordx4 v[{b}:{b+3}], v{AV+i}, s[12:15], s33 offen offset:{kk*1024}', ('A', s), rel, dl, st))
        out.append(light('s_add_u32 s33, s33, 2048', rel, dl, st))
        return out
    def rdW(gi, rel=0, dl=10**9):
        s, nb = divmod(gi, 8)
        buf = FR + 8*(gi % 8)
        base = (s & 3)*16384
        if opts.get('noR') and gi >= 32: return []
        return [dsr(f'ds_read_b64_tr_b16 a[{buf+4*kk+2*t}:{buf+4*kk+2*t+1}], v{VA+nb} offset:{base + kk*8192 + t*4096}', ('R', gi), rel, dl, 'ds') for kk in range(2) for t in range(2)]
    def emit_now(lst):
        for it in lst: em.emit(it)
    WDIST = opts.get('WDIST', 3)
    emit_now(dmaW(0)); emit_now(loadA(0)); emit_now(dmaW(1)); emit_now(loadA(1))
    em.emit(wait(wvm=('W', 0)))
    k.e('s_barrier')
    k.stamp(1)
    for gi in range(PD): emit_now(rdW(gi))
    def epi_loads():
        out = []
        out.append(light('v_lshlrev_b32 v2, 4, v4', stream='epi'))
        out.append(light(f's_lshl_b32 s42, s40, 9\ns_lshl_b32 s43, s41, 8\ns_add_u32 s42, s42, s43\ns_add_u32 s42, s42, {gidx*4096}', stream='epi'))
        for pp in range(2):
            for nb in range(4):
                out.append(vmem(f'buffer_load_dwordx4 v[{GV+16*pp+4*nb}:{GV+16*pp+4*nb+3}], v2, s[20:23], s42 offen offset:{nb*64}', 'epi', stream='epi'))
            if pp == 0: out.append(light(f's_add_u32 s42, s42, {MODP}', stream='epi'))
        if which == 'wo':
            out.append(light('v_lshlrev_b32 v6, 11, v5\nv_lshl_add_u32 v6, v4, 3, v6', stream='epi'))
            out.append(light('s_lshl_b32 s42, s39, 18\ns_lshl_b32 s43, s32, 16\ns_add_u32 s42, s42, s43\ns_lshl_b32 s43, s40, 8\ns_add_u32 s42, s42, s43\ns_lshl_b32 s43, s41, 7\ns_add_u32 s42, s42, s43', stream='epi'))
            for i in range(2):
                for nb in range(4):
                    out.append(vmem(f'buffer_load_dwordx2 v[{XR+8*i+2*nb}:{XR+8*i+2*nb+1}], v6, s[24:27], s42 offen offset:{nb*32}', 'epi', stream='epi'))
                if i == 0: out.append(light('s_add_u32 s42, s42, 0x8000', stream='epi'))
        else:
            out.append(light('s_lshl_b32 s42, s39, 18\ns_lshl_b32 s43, s32, 16\ns_add_u32 s42, s42, s43\ns_lshl_b32 s43, s40, 12\ns_add_u32 s42, s42, s43\ns_lshl_b32 s43, s41, 11\ns_add_u32 s42, s42, s43', stream='epi'))
            for i in range(2):
                for p in range(2):
                    out.append(vmem(f'buffer_load_dwordx4 v[{XR+8*i+4*p}:{XR+8*i+4*p+3}], v3, s[24:27], s42 offen offset:{p*1024}', 'epi', stream='epi'))
                if i == 0: out.append(light('s_add_u32 s42, s42, 0x8000', stream='epi'))
        return out
    def segment(g0, g1, NG, NS, extra=None, first=False):
        mf = []; pinned = {}; items = []
        if first:
            items += spread(dmaW(2), 1, 2, 1)
            for s in range(2, AD): items += spread(loadA(s), 2, 3, 1)
        for gi in range(g0, g1):
            s, nb = divmod(gi, 8)
            m0 = 4*(gi - g0)
            pin = []
            if gi % 2 == 0:
                pin.append(wait(wvm=('A', s) if nb == 0 else None, wlg=('R', min(gi + 1, NG - 1))))
            nxt = gi + PD
            if nxt < NG:
                if nxt % 8 == 0:
                    pin += [wait(wvm=('W', nxt // 8)), It('s_barrier', 4, 'light')]
                rr = rdW(nxt)
                for it, p in zip(rr, (0, 2, 2, 3)): it.rel = it.dl = m0 + p
                items += rr
            if pin: pinned[m0] = pin
            if nb == 0:
                if s + AD < NS: items += spread(loadA(s + AD), m0 + (1 if not (first and s == 0) else 13), 4, 0)
                if s + WDIST < NS: items += spread(dmaW(s + WDIST), m0 + 4*(8 - PD) + 1, 4, 0)
            buf = FR + 8*(gi % 8)
            for q in range(4):
                i, kk = q >> 1, q & 1
                acc = (nb*2 + i)*4
                ab = ACT + 16*(s % 4) + 8*kk + 4*i
                c = '0' if (first and s == 0 and kk == 0) else f'a[{acc}:{acc+3}]'
                mf.append(f'v_mfma_f32_16x16x32_bf16 a[{acc}:{acc+3}], a[{buf+4*kk}:{buf+4*kk+3}], v[{ab}:{ab+3}], {c}')
        if extra:
            for it in extra: it.rel = 40; it.dl = 4*(g1 - g0) - 8
            items += extra
        return schedule(em, mf, pinned, items, verbose=opts.get('verbose', False), vm_space=3)
    BIG = 10**9
    segment(0, 32, BIG, BIG, first=True)
    if opts.get('fine'): k.stamp(7)
    k.e(f's_mov_b32 s36, {nst//4 - 2}')
    emit_loop(k, f'L_{name}_loop', lambda t: segment(32*(t+1), 32*(t+2), BIG, BIG))
    k.e(f's_sub_u32 s36, s36, 1\ns_cmp_lg_u32 s36, 0\ns_cbranch_scc1 L_{name}_loop')
    if opts.get('fine'): k.stamp(8)
    segment(96, 128, 128, 16, epi_loads())
    k.stamp(2)
    k.e('s_lshl_b32 s42, s44, 1\ns_add_u32 s43, s42, s41\ns_lshl_b32 s43, s43, 2\ns_add_u32 s43, s43, s32\ns_lshl_b32 s43, s43, 13')
    k.e('s_xor_b32 s45, s41, 1\ns_add_u32 s45, s42, s45\ns_lshl_b32 s45, s45, 2\ns_add_u32 s45, s45, s32\ns_lshl_b32 s45, s45, 13')
    for b in range(8):
        acc = (8 + b)*4
        if b == 4: k.e('s_add_u32 s43, s43, 4096')
        k.e(f'buffer_store_dwordx4 a[{acc}:{acc+3}], v3, s[48:51], s43 offen offset:{(b%4)*1024} sc1')
    OWN = ACT
    for i in range(32): k.e(f'v_accvgpr_read_b32 v{OWN+i}, a{i}')
    k.e('s_waitcnt vmcnt(0)')
    k.e('s_barrier')
    k.stamp(3)
    k.e(f's_cmp_lg_u32 s32, 0\ns_cbranch_scc1 L_{name}_polled')
    k.e('s_lshr_b32 s42, s44, 1\ns_lshl_b32 s42, s42, 2\nv_mov_b32 v6, s42')
    k.e('s_and_b32 s42, s44, 1\ns_lshl_b32 s42, s42, 4\ns_lshl_b32 s46, 1, s42\nv_mov_b32 v7, s46')
    k.e('s_mov_b64 s[52:53], exec\ns_mov_b64 exec, 1')
    k.e('global_atomic_add v2, v6, v7, s[10:11] sc0')
    k.e('s_waitcnt vmcnt(0)')
    k.e('v_readfirstlane_b32 s46, v2')
    k.e('s_lshr_b32 s46, s46, s42\ns_and_b32 s46, s46, 0xffff')
    k.e(f's_cmp_ge_u32 s46, 1\ns_cbranch_scc1 L_{name}_pdone')
    k.e('s_mov_b32 s47, 0x400000')
    k.label(f'L_{name}_poll')
    k.e('global_load_dword v7, v6, s[10:11] sc1')
    k.e('s_waitcnt vmcnt(0)')
    k.e('v_readfirstlane_b32 s46, v7')
    k.e('s_sub_u32 s47, s47, 1')
    k.e(f's_cmp_eq_u32 s47, 0\ns_cbranch_scc1 L_{name}_pdone')
    k.e('s_lshr_b32 s46, s46, s42\ns_and_b32 s46, s46, 0xffff')
    k.e(f's_cmp_lt_u32 s46, 2\ns_cbranch_scc1 L_{name}_poll')
    k.label(f'L_{name}_pdone')
    k.e('s_mov_b64 exec, s[52:53]')
    k.label(f'L_{name}_polled')
    k.e('s_barrier')
    k.stamp(4)
    PR = ACT + 32
    for b in range(8):
        if b == 4: k.e('s_add_u32 s45, s45, 4096')
        k.e(f'buffer_load_dwordx4 v[{PR+4*b}:{PR+4*b+3}], v3, s[48:51], s45 offen offset:{(b%4)*1024} sc1')
    for i in range(16): k.e(f'v_add_f32 v{GV+i}, v{GV+i}, v{GV+16+i}')
    for i in range(0, 16, 2): bf16_round(k, GV+i, GV+i+1, T)
    k.e('s_waitcnt vmcnt(0)')
    for i in range(32): k.e(f'v_add_f32 v{OWN+i}, v{OWN+i}, v{PR+i}')
    P = T + 2
    for i in range(2):
        for nb in range(4):
            for u in range(2):
                xr = XR + 8*i + 2*nb + u
                o = OWN + (nb*2 + i)*4 + 2*u
                k.e(f'v_lshlrev_b32 v{T}, 16, v{xr}')
                k.e(f'v_and_b32 v{T+1}, 0xffff0000, v{xr}')
                k.e(f'v_fma_f32 v{o}, v{o}, v{GV+4*nb+2*u}, v{T}')
                k.e(f'v_fma_f32 v{o+1}, v{o+1}, v{GV+4*nb+2*u+1}, v{T+1}')
                k.e(f'v_cvt_pk_bf16_f32 v{P + i*8 + nb*2 + u}, v{o}, v{o+1}')
    if which == 'wo':
        k.e('s_lshl_b32 s42, s39, 18\ns_lshl_b32 s43, s32, 16\ns_add_u32 s42, s42, s43\ns_lshl_b32 s43, s40, 12\ns_add_u32 s42, s42, s43\ns_lshl_b32 s43, s41, 11\ns_add_u32 s42, s42, s43')
        for i in range(2):
            for p in range(2):
                r = P + i*8 + p*4
                k.e(f'buffer_store_dwordx4 v[{r}:{r+3}], v3, s[28:31], s42 offen offset:{p*1024}')
            if i == 0: k.e('s_add_u32 s42, s42, 0x8000')
    else:
        for i in range(2):
            for p in range(2):
                r = P + i*8 + p*4
                for u in range(2): k.e(f'v_permlane32_swap_b32 v{r+u}, v{r+2+u}')
                k.e('s_nop 0')
                for u in range(2): k.e(f'v_permlane16_swap_b32 v{r+u}, v{r+2+u}')
        k.e('v_lshlrev_b32 v6, 11, v5\nv_lshl_add_u32 v6, v4, 4, v6')
        k.e('s_lshl_b32 s42, s39, 18\ns_lshl_b32 s43, s32, 16\ns_add_u32 s42, s42, s43\ns_lshl_b32 s43, s40, 8\ns_add_u32 s42, s42, s43\ns_lshl_b32 s43, s41, 7\ns_add_u32 s42, s42, s43')
        for i in range(2):
            for p in range(2):
                r = P + i*8 + p*4
                k.e(f'buffer_store_dwordx4 v[{r}:{r+3}], v6, s[28:31], s42 offen offset:{p*64}')
            if i == 0: k.e('s_add_u32 s42, s42, 0x8000')
    if Kern.stamps:
        k.stamp(5); k.e('s_waitcnt vmcnt(0)'); k.stamp(6); k.flush_stamps(32)
    k.label(f'L_{name}_end')
    k.e('s_endpgm')
    return k.finish(vgpr=196, agpr=128, sgpr=56)
```

```python
from common import *

class It:
    __slots__ = ('text', 'cost', 'kind', 'tag', 'rel', 'dl', 'deps', 'stream', 'gap', 'wvm', 'wlg', 'hard', 'idx')
    def __init__(self, text, cost=4, kind='light', tag=None, rel=0, dl=10**9, deps=(), stream=None, wvm=None, wlg=None):
        self.text = text; self.cost = cost; self.kind = kind; self.tag = tag
        self.rel = rel; self.dl = dl; self.deps = list(deps); self.stream = stream
        self.gap = None; self.wvm = wvm; self.wlg = wlg; self.hard = None; self.idx = 0
def vmem(text, tag, rel=0, dl=10**9, stream='vm', deps=()): return It(text, 8, 'vmem', tag, rel, dl, deps, stream)
def dsr(text, tag, rel=0, dl=10**9, stream='ds', deps=()): return It(text, 4, 'ds', tag, rel, dl, deps, stream)
def light(text, rel=0, dl=10**9, stream=None, cost=4, deps=()): return It(text, cost, 'light', None, rel, dl, deps, stream)
def wait(wvm=None, wlg=None): return It(None, 4, 'wait', None, wvm=wvm, wlg=wlg)

class Emitter:
    def __init__(self, k):
        self.k = k; self.vm = Counter(); self.lg = Counter()
    def emit(self, it):
        k = self.k
        if it.kind == 'wait':
            w = []
            def cnt(c, tags):
                if tags is None: return None
                if not isinstance(tags, list): tags = [tags]
                vals = [c.count_after(t) for t in tags]
                vals = [v for v in vals if v is not None]
                return min(vals) if vals else None
            a = cnt(self.vm, it.wvm); b = cnt(self.lg, it.wlg)
            if a is not None: w.append(f'vmcnt({min(a, 63)})')
            if b is not None: w.append(f'lgkmcnt({min(b, 15)})')
            if w: k.e('s_waitcnt ' + ' '.join(w))
            return
        k.e(it.text)
        if it.kind == 'vmem' and it.tag is not None: self.vm.issue(it.tag)
        if it.kind == 'ds': self.lg.issue(it.tag)

def gap_cost(seq):
    t = 8; nmem = 0; seen_valu = False; prev_mem = ''
    for it in seq:
        if it.kind in ('ds', 'vmem'):
            base = 4 if it.kind == 'ds' else 8
            if nmem and it.kind == 'ds': base += 4 if ('tr' in it.text and 'tr' in prev_mem) else 8
            if seen_valu: base += 8
            t += base; nmem += 1; prev_mem = it.text
        else:
            t += it.cost
            if it.kind == 'light' and it.text and it.text.startswith('v_'): seen_valu = True
    return max(16, t)

_CACHE = {}
def schedule(em, mfmas, pinned, items, verbose=False, vm_space=1, optimize=0):
    n = len(mfmas)
    for g, lst in list(pinned.items()):
        merged = []
        for it in lst:
            if it.kind == 'wait' and merged and merged[-1].kind == 'wait':
                p = merged[-1]
                def cat(a, b):
                    if a is None: return b
                    if b is None: return a
                    a = a if isinstance(a, list) else [a]; b = b if isinstance(b, list) else [b]
                    return a + b
                merged[-1] = wait(cat(p.wvm, it.wvm), cat(p.wlg, it.wlg))
            else: merged.append(it)
        pinned[g] = merged
    streams = {}
    for i, it in enumerate(items):
        key = it.stream if it.stream is not None else ('_', i)
        it.stream = key
        streams.setdefault(key, []).append(it)
    heads = {s: 0 for s in streams}
    total = 0; last_vm = -10
    out = []
    def avail(it, g, same_gap_ok=False):
        if it.rel > g: return False
        for d in it.deps:
            if d.gap is None or d.gap >= g: return False
        return True
    def cands(g):
        return [streams[s][heads[s]] for s in streams if heads[s] < len(streams[s]) and avail(streams[s][heads[s]], g)]
    G = [[] for _ in range(n)]
    for s_, lst in streams.items():
        for i, it in enumerate(lst): it.idx = i
    for g in range(n):
        pin = pinned.get(g + 1, [])
        budget = 8 - sum(p.cost for p in pin)
        mem = []; oth = []
        def take(it):
            it.gap = g; heads[it.stream] += 1
            (mem if it.kind in ('ds', 'vmem') else oth).append(it)
        def used(): return sum(4 if i.kind == 'ds' else (8 if i.kind == 'vmem' else i.cost) for i in mem + oth)
        while True:
            f = [c for c in cands(g) if c.dl <= g]
            if not f: break
            take(min(f, key=lambda c: c.dl))
        while used() < budget:
            cs = cands(g); rem = budget - used()
            if not cs: break
            ds = [c for c in cs if c.kind == 'ds'] if not mem else []
            vm = [c for c in cs if c.kind == 'vmem'] if (not mem and not oth and rem >= 8 and g - last_vm >= vm_space) else []
            li = [c for c in cs if c.kind not in ('ds', 'vmem') and c.cost <= rem]
            pool = ds + vm + li
            if not pool: break
            pick = min(pool, key=lambda c: (c.dl, -c.cost))
            if pick.kind not in ('ds', 'vmem') and pick.cost == 4 and rem >= 8:
                if ds: take(min(ds, key=lambda c: c.dl)); take(pick); continue
                others = [c for c in li if c is not pick and c.cost == 4]
                st = streams[pick.stream]; h = heads[pick.stream]
                nxt_same = st[h+1] if h + 1 < len(st) else None
                same_ok = nxt_same is not None and nxt_same.cost == 4 and nxt_same.kind == 'light' and nxt_same.rel <= g and all(d.gap is not None and d.gap < g for d in nxt_same.deps)
                if not others and not same_ok:
                    big = [c for c in li if c.cost == 8] + vm
                    if big: pick = min(big, key=lambda c: c.dl)
            take(pick)
        if any(i.kind == 'vmem' for i in mem): last_vm = g
        G[g] = mem + oth
    def seq_of(lst):
        mem = [x for x in lst if x.kind in ('ds', 'vmem')]
        pre = [x for x in lst if x not in mem and any(x.stream == m.stream and x.idx < m.idx for m in mem)]
        rest = [x for x in lst if x not in mem and x not in pre]
        key = lambda x: (str(x.stream), x.idx)
        mem.sort(key=lambda x: x.idx if True else 0)
        pre.sort(key=lambda x: x.idx)
        rest2 = sorted(rest, key=lambda x: lst.index(x))
        changed = True
        while changed:
            changed = False
            for i in range(len(rest2) - 1):
                for j2 in range(i + 1, len(rest2)):
                    if rest2[i].stream == rest2[j2].stream and rest2[i].idx > rest2[j2].idx:
                        rest2[i], rest2[j2] = rest2[j2], rest2[i]; changed = True
        return pre + mem + rest2
    def cost_of(g, lst): return gap_cost(seq_of(lst) + list(pinned.get(g + 1, [])))
    if optimize:
        import random
        rnd = random.Random(12345)
        placed = [it for g in range(n) for it in G[g]]
        users = {}
        for it in placed:
            for d in it.deps: users.setdefault(id(d), []).append(it)
        C = [cost_of(g, G[g]) for g in range(n)]
        def window(it):
            lo = it.rel; hi = min(n - 1, it.hard if it.hard is not None else it.dl)
            st = streams[it.stream]
            if it.idx > 0 and st[it.idx - 1].gap is not None: lo = max(lo, st[it.idx - 1].gap)
            if it.idx + 1 < len(st):
                nx = st[it.idx + 1]
                if nx.gap is not None and nx.gap < n: hi = min(hi, nx.gap)
            for d in it.deps:
                if d.gap is not None: lo = max(lo, d.gap + 1)
            for u in users.get(id(it), []):
                if u.gap is not None: hi = min(hi, u.gap - 1)
            return lo, hi
        def vm_ok(it, g2):
            if it.kind != 'vmem': return True
            for o in placed:
                if o is not it and o.kind == 'vmem' and abs(o.gap - g2) < vm_space: return False
            return True
        for iter_ in range(optimize):
            it = rnd.choice(placed)
            lo, hi = window(it)
            if hi <= lo: continue
            g1 = it.gap; g2 = rnd.randint(lo, hi)
            if g2 == g1 or not vm_ok(it, g2): continue
            l1 = [x for x in G[g1] if x is not it]; l2 = G[g2] + [it]
            c1 = cost_of(g1, l1); c2 = cost_of(g2, l2)
            d = c1 + c2 - C[g1] - C[g2]
            if d < 0 or (d == 0 and rnd.random() < 0.5):
                G[g1] = l1; G[g2] = l2; C[g1] = c1; C[g2] = c2; it.gap = g2
    for g in range(n):
        for it in pinned.get(g, []): out.append(it)
        out.append(mfmas[g])
        out += seq_of(G[g])
        total += cost_of(g, G[g])
    left = []
    for s, lst in streams.items(): left += lst[heads[s]:]
    for it in left:
        it.gap = n; out.append(it)
    total += sum(it.cost for it in left)
    for it in pinned.get(n, []): out.append(it)
    for o in out:
        if isinstance(o, str): em.k.e(o)
        else: em.emit(o)
    if verbose: print(f'[sched] {n} mfma, model {total} cycles, leftovers {len(left)}')
    return total

def pace(lst, rel, dl):
    n = len(lst)
    for i, it in enumerate(lst):
        it.rel = max(it.rel, 0) if it.rel > rel else rel
        it.dl = int(round(rel + (dl - rel) * (i + 1) / n))
    return lst

def spread(lst, start, step, slack=None):
    slack = step - 1 if slack is None else slack
    pos = start
    out = list(lst)
    nxt = [None]*len(out)
    p = start
    for i, it in enumerate(out):
        if it.kind == 'vmem':
            it.rel = p; it.dl = p + slack; p += step
    last = None
    for i in range(len(out) - 1, -1, -1):
        it = out[i]
        if it.kind == 'vmem': last = it
        else:
            if last is not None: it.rel = max(0, last.rel - 3); it.dl = last.rel
            else: it.rel = p - step + 1; it.dl = p + 4
    return out
```

```python
from common import *
from k_prep2 import MODP, MODSZ, bf16_round
from sched import *
WS_XCH = 0x3000000
WS_STATS = 0x3800000

def kern_gemm2(which, opts=None, suffix=''):
    opts = opts or {}
    name = f'{which}{suffix}_kernel'
    k = Kern(name); k.kidx = opts.get('kidx', 0)
    if which == 'wo':
        KD_, act_off, wptr, gidx = 4096, WS_O, A_WO, 2
    else:
        KD_, act_off, wptr, gidx = 3584, WS_ACT, A_WD, 5
    nks = KD_ // 32
    nst = nks // 4
    AV = 8; WD = 10; VA = 16; WF = 24; ACT = 64; XR = 128; GV = 144; T = 176
    AD = opts.get('AD', 3)
    LN = (which == 'wo' and opts.get('ln', True))
    SCP = 24; SHP = 196
    k.e(f's_cmp_ge_u32 s2, 256\ns_cbranch_scc1 L_{name}_end')
    k.e(f's_load_dwordx2 s[4:5], s[0:1], {A_WS}')
    k.e(f's_load_dwordx2 s[6:7], s[0:1], {wptr}')
    k.e(f's_load_dwordx2 s[8:9], s[0:1], {A_X if which == "wo" else A_OUT}')
    k.e(f's_load_dwordx2 s[10:11], s[0:1], {A_DBG}')
    k.stamp(0)
    k.e('v_lshrrev_b32 v2, 6, v0\nv_and_b32 v1, 63, v0\nv_readfirstlane_b32 s32, v2')
    k.e('s_and_b32 s37, s2, 7\ns_lshr_b32 s38, s2, 3')
    if opts.get('xmap', 1) == 0:
        k.e('s_and_b32 s41, s38, 1')
        k.e('s_lshr_b32 s39, s37, 1\ns_lshl_b32 s39, s39, 2\ns_lshr_b32 s40, s38, 3\ns_add_u32 s39, s39, s40')
        k.e('s_and_b32 s40, s37, 1\ns_lshl_b32 s40, s40, 2\ns_bfe_u32 s42, s38, 0x20001\ns_add_u32 s40, s40, s42')
    else:
        k.e('s_and_b32 s41, s37, 1')
        k.e('s_lshr_b32 s39, s37, 1\ns_lshl_b32 s39, s39, 2\ns_lshr_b32 s40, s38, 3\ns_add_u32 s39, s39, s40')
        k.e('s_and_b32 s40, s38, 7')
    k.e('s_lshl_b32 s44, s39, 3\ns_add_u32 s44, s44, s40')
    k.e('s_lshl_b32 s35, s32, 12')
    k.e('v_lshrrev_b32 v4, 4, v1\nv_and_b32 v5, 15, v1\nv_lshlrev_b32 v3, 4, v1')
    k.e(f'v_mov_b32 v{AV}, v3\nv_add_u32 v{AV+1}, {nks*1024}, v3')
    k.e(f's_lshl_b32 s33, s39, 3\ns_lshl_b32 s42, s32, 1\ns_add_u32 s33, s33, s42\ns_mul_i32 s33, s33, {nks*1024}')
    k.e(f's_mul_i32 s42, s41, {nks*512}\ns_add_u32 s33, s33, s42')
    for n in range(4):
        k.e(f'v_add_u32 v6, {4*n}, v4\nv_and_b32 v7, 7, v6')
        k.e('v_lshrrev_b32 v2, 1, v5\nv_xor_b32 v7, v7, v2\nv_lshlrev_b32 v7, 5, v7')
        k.e('v_and_b32 v2, 1, v5\nv_lshl_add_u32 v7, v2, 4, v7')
        k.e(f'v_lshl_add_u32 v7, v6, 11, v7\nv_subrev_u32 v{WD+n}, {1024*n}, v7')
    k.e(f's_mul_i32 s34, s41, {KD_//2*2048}\ns_lshl_b32 s42, s32, 15\ns_add_u32 s34, s34, s42\ns_lshl_b32 s42, s40, 8\ns_add_u32 s34, s34, s42')
    k.e('v_bfe_u32 v6, v1, 2, 2\nv_lshl_add_u32 v6, v4, 2, v6\nv_and_b32 v7, 7, v6')
    k.e('v_lshlrev_b32 v7, 5, v7\nv_lshl_add_u32 v7, v6, 8, v7\nv_and_b32 v6, 3, v1\nv_lshl_add_u32 v7, v6, 3, v7')
    k.e('s_lshl_b32 s42, s41, 7\nv_xor_b32 v7, s42, v7')
    for nb in range(8): k.e(f'v_xor_b32 v{VA+nb}, {nb*32}, v7')
    k.e('s_waitcnt lgkmcnt(0)')
    srd(k, 12, 4, 5, 2048*KD_*2, act_off)
    srd(k, 16, 6, 7, KD_*2048)
    srd(k, 20, 4, 5, MODSZ, WS_MOD)
    if which == 'wo':
        srd(k, 24, 8, 9, SZ_ACTV); srd(k, 28, 4, 5, SZ_ACTV, WS_X1)
    else:
        srd(k, 24, 4, 5, SZ_ACTV, WS_X1); srd(k, 28, 8, 9, SZ_ACTV)
    srd(k, 48, 4, 5, 0x800000, WS_XCH)
    em = Emitter(k)
    FR = 64
    PD = opts.get('PD', 4)
    def dmaW(s, rel=0, dl=10**9):
        st = 'vmW'
        out = [light(f's_add_u32 m0, s35, {(s & 3)*16384}', rel, dl, st)]
        for p in range(4):
            if opts.get('noW') and s >= 4: continue
            out.append(vmem(f'buffer_load_dwordx4 v{WD+p}, s[16:19], s34 offen offset:{1024*p} lds', ('W', s), rel, dl, st))
        out.append(light(f's_add_u32 s34, s34, {64*2048}', rel, dl, st))
        return out
    def loadA(s, rel=0, dl=10**9):
        st = 'vmA'; out = []
        for kk in range(2):
            for i in range(2):
                b = ACT + 16*(s % 4) + 8*kk + 4*i
                if opts.get('noA') and s >= 4: continue
                out.append(vmem(f'buffer_load_dwordx4 v[{b}:{b+3}], v{AV+i}, s[12:15], s33 offen offset:{kk*1024}', ('A', s), rel, dl, st))
        out.append(light('s_add_u32 s33, s33, 2048', rel, dl, st))
        return out
    def rdW(gi, rel=0, dl=10**9):
        s, nb = divmod(gi, 8)
        buf = FR + 8*(gi % 8)
        base = (s & 3)*16384
        if opts.get('noR') and gi >= 32: return []
        return [dsr(f'ds_read_b64_tr_b16 a[{buf+4*kk+2*t}:{buf+4*kk+2*t+1}], v{VA+nb} offset:{base + kk*8192 + t*4096}', ('R', gi), rel, dl, 'ds') for kk in range(2) for t in range(2)]
    def emit_now(lst):
        for it in lst: em.emit(it)
    WDIST = opts.get('WDIST', 3)
    emit_now(dmaW(0)); emit_now(loadA(0)); emit_now(dmaW(1)); emit_now(loadA(1))
    em.emit(wait(wvm=('W', 0)))
    k.e('s_barrier')
    k.stamp(1)
    for gi in range(PD): emit_now(rdW(gi))
    def epi_loads():
        out = []
        out.append(light('v_lshlrev_b32 v2, 4, v4', stream='epi'))
        out.append(light(f's_lshl_b32 s42, s40, 9\ns_lshl_b32 s43, s41, 8\ns_add_u32 s42, s42, s43\ns_add_u32 s42, s42, {gidx*4096}', stream='epi'))
        for pp in range(2):
            for nb in range(4):
                out.append(vmem(f'buffer_load_dwordx4 v[{GV+16*pp+4*nb}:{GV+16*pp+4*nb+3}], v2, s[20:23], s42 offen offset:{nb*64}', 'epi', stream='epi'))
            if pp == 0: out.append(light(f's_add_u32 s42, s42, {MODP}', stream='epi'))
        if LN:
            for idx, R0 in ((4, SCP), (3, SHP)):
                out.append(light(f's_lshl_b32 s42, s40, 9\ns_lshl_b32 s43, s41, 8\ns_add_u32 s42, s42, s43\ns_add_u32 s42, s42, {idx*4096}', stream='epi'))
                for pp in range(2):
                    for nb in range(4):
                        out.append(vmem(f'buffer_load_dwordx4 v[{R0+16*pp+4*nb}:{R0+16*pp+4*nb+3}], v2, s[20:23], s42 offen offset:{nb*64}', 'epi', stream='epi'))
                    if pp == 0: out.append(light(f's_add_u32 s42, s42, {MODP}', stream='epi'))
        if which == 'wo':
            out.append(light('v_lshlrev_b32 v6, 11, v5\nv_lshl_add_u32 v6, v4, 3, v6', stream='epi'))
            out.append(light('s_lshl_b32 s42, s39, 18\ns_lshl_b32 s43, s32, 16\ns_add_u32 s42, s42, s43\ns_lshl_b32 s43, s40, 8\ns_add_u32 s42, s42, s43\ns_lshl_b32 s43, s41, 7\ns_add_u32 s42, s42, s43', stream='epi'))
            for i in range(2):
                for nb in range(4):
                    out.append(vmem(f'buffer_load_dwordx2 v[{XR+8*i+2*nb}:{XR+8*i+2*nb+1}], v6, s[24:27], s42 offen offset:{nb*32}', 'epi', stream='epi'))
                if i == 0: out.append(light('s_add_u32 s42, s42, 0x8000', stream='epi'))
        else:
            out.append(light('s_lshl_b32 s42, s39, 18\ns_lshl_b32 s43, s32, 16\ns_add_u32 s42, s42, s43\ns_lshl_b32 s43, s40, 12\ns_add_u32 s42, s42, s43\ns_lshl_b32 s43, s41, 11\ns_add_u32 s42, s42, s43', stream='epi'))
            for i in range(2):
                for p in range(2):
                    out.append(vmem(f'buffer_load_dwordx4 v[{XR+8*i+4*p}:{XR+8*i+4*p+3}], v3, s[24:27], s42 offen offset:{p*1024}', 'epi', stream='epi'))
                if i == 0: out.append(light('s_add_u32 s42, s42, 0x8000', stream='epi'))
        return out
    def segment(g0, g1, NG, NS, extra=None, first=False):
        mf = []; pinned = {}; items = []
        if first:
            items += spread(dmaW(2), 1, 2, 1)
            for s in range(2, AD): items += spread(loadA(s), 2, 3, 1)
        for gi in range(g0, g1):
            s, nb = divmod(gi, 8)
            m0 = 4*(gi - g0)
            pin = []
            if gi % 2 == 0:
                pin.append(wait(wvm=('A', s) if nb == 0 else None, wlg=('R', min(gi + 1, NG - 1))))
            nxt = gi + PD
            if nxt < NG:
                if nxt % 8 == 0:
                    pin += [wait(wvm=('W', nxt // 8)), It('s_barrier', 4, 'light')]
                rr = rdW(nxt)
                for it, p in zip(rr, (0, 2, 2, 3)): it.rel = it.dl = m0 + p
                items += rr
            if pin: pinned[m0] = pin
            if nb == 0:
                if s + AD < NS: items += spread(loadA(s + AD), m0 + (1 if not (first and s == 0) else 13), 4, 0)
                if s + WDIST < NS: items += spread(dmaW(s + WDIST), m0 + 4*(8 - PD) + 1, 4, 0)
            buf = FR + 8*(gi % 8)
            for q in range(4):
                i, kk = q >> 1, q & 1
                acc = (nb*2 + i)*4
                ab = ACT + 16*(s % 4) + 8*kk + 4*i
                c = '0' if (first and s == 0 and kk == 0) else f'a[{acc}:{acc+3}]'
                mf.append(f'v_mfma_f32_16x16x32_bf16 a[{acc}:{acc+3}], a[{buf+4*kk}:{buf+4*kk+3}], v[{ab}:{ab+3}], {c}')
        if extra:
            items += spread(extra, 30, 2, 1)
        return schedule(em, mf, pinned, items, verbose=opts.get('verbose', False), vm_space=3)
    BIG = 10**9
    segment(0, 32, BIG, BIG, first=True)
    if opts.get('fine'): k.stamp(7)
    k.e(f's_mov_b32 s36, {nst//4 - 2}')
    emit_loop(k, f'L_{name}_loop', lambda t: segment(32*(t+1), 32*(t+2), BIG, BIG))
    k.e(f's_sub_u32 s36, s36, 1\ns_cmp_lg_u32 s36, 0\ns_cbranch_scc1 L_{name}_loop')
    if opts.get('fine'): k.stamp(8)
    segment(96, 128, 128, 16, epi_loads())
    k.stamp(2)
    k.e('s_lshl_b32 s42, s44, 1\ns_add_u32 s43, s42, s41\ns_lshl_b32 s43, s43, 2\ns_add_u32 s43, s43, s32\ns_lshl_b32 s43, s43, 13')
    k.e('s_xor_b32 s45, s41, 1\ns_add_u32 s45, s42, s45\ns_lshl_b32 s45, s45, 2\ns_add_u32 s45, s45, s32\ns_lshl_b32 s45, s45, 13')
    for b in range(8):
        acc = (8 + b)*4
        if b == 4: k.e('s_add_u32 s43, s43, 4096')
        k.e(f'buffer_store_dwordx4 a[{acc}:{acc+3}], v3, s[48:51], s43 offen offset:{(b%4)*1024} sc1')
    OWN = ACT
    for i in range(32): k.e(f'v_accvgpr_read_b32 v{OWN+i}, a{i}')
    k.e('s_waitcnt vmcnt(0)')
    k.e('s_barrier')
    k.stamp(3)
    k.e(f's_cmp_lg_u32 s32, 0\ns_cbranch_scc1 L_{name}_polled')
    k.e('s_lshr_b32 s42, s44, 2\ns_lshl_b32 s42, s42, 2\nv_mov_b32 v6, s42')
    k.e('s_and_b32 s42, s44, 3\ns_lshl_b32 s42, s42, 3\ns_lshl_b32 s46, 1, s42\nv_mov_b32 v7, s46')
    k.e('s_mov_b64 s[52:53], exec\ns_mov_b64 exec, 1')
    k.e('global_atomic_add v2, v6, v7, s[10:11] sc0')
    k.e('s_waitcnt vmcnt(0)')
    k.e('v_readfirstlane_b32 s46, v2')
    k.e('s_lshr_b32 s46, s46, s42\ns_and_b32 s46, s46, 0xff')
    k.e(f's_cmp_ge_u32 s46, 1\ns_cbranch_scc1 L_{name}_pdone')
    k.e('s_mov_b32 s47, 0x400000')
    k.label(f'L_{name}_poll')
    k.e('global_load_dword v7, v6, s[10:11] sc1')
    k.e('s_waitcnt vmcnt(0)')
    k.e('v_readfirstlane_b32 s46, v7')
    k.e('s_sub_u32 s47, s47, 1')
    k.e(f's_cmp_eq_u32 s47, 0\ns_cbranch_scc1 L_{name}_pdone')
    k.e('s_lshr_b32 s46, s46, s42\ns_and_b32 s46, s46, 0xff')
    k.e(f's_cmp_lt_u32 s46, 2\ns_cbranch_scc1 L_{name}_poll')
    k.label(f'L_{name}_pdone')
    k.e('s_mov_b64 exec, s[52:53]')
    k.label(f'L_{name}_polled')
    k.e('s_barrier')
    k.stamp(4)
    PR = ACT + 32
    for b in range(8):
        if b == 4: k.e('s_add_u32 s45, s45, 4096')
        k.e(f'buffer_load_dwordx4 v[{PR+4*b}:{PR+4*b+3}], v3, s[48:51], s45 offen offset:{(b%4)*1024} sc1')
    for i in range(16): k.e(f'v_add_f32 v{GV+i}, v{GV+i}, v{GV+16+i}')
    for i in range(0, 16, 2): bf16_round(k, GV+i, GV+i+1, T)
    k.e('s_waitcnt vmcnt(0)')
    for i in range(32): k.e(f'v_add_f32 v{OWN+i}, v{OWN+i}, v{PR+i}')
    P = T + 2
    for i in range(2):
        for nb in range(4):
            for u in range(2):
                xr = XR + 8*i + 2*nb + u
                o = OWN + (nb*2 + i)*4 + 2*u
                k.e(f'v_lshlrev_b32 v{T}, 16, v{xr}')
                k.e(f'v_and_b32 v{T+1}, 0xffff0000, v{xr}')
                k.e(f'v_fma_f32 v{o}, v{o}, v{GV+4*nb+2*u}, v{T}')
                k.e(f'v_fma_f32 v{o+1}, v{o+1}, v{GV+4*nb+2*u+1}, v{T+1}')
                k.e(f'v_cvt_pk_bf16_f32 v{P + i*8 + nb*2 + u}, v{o}, v{o+1}')
    if which == 'wo':
        k.e('s_lshl_b32 s42, s39, 18\ns_lshl_b32 s43, s32, 16\ns_add_u32 s42, s42, s43\ns_lshl_b32 s43, s40, 12\ns_add_u32 s42, s42, s43\ns_lshl_b32 s43, s41, 11\ns_add_u32 s56, s42, s43')
        k.e('s_mov_b32 s42, s56')
        for i in range(2):
            for p in range(2):
                r = P + i*8 + p*4
                k.e(f'buffer_store_dwordx4 v[{r}:{r+3}], v3, s[28:31], s42 offen offset:{p*1024}')
            if i == 0: k.e('s_add_u32 s42, s42, 0x8000')
        if LN:
            srd(k, 60, 4, 5, 0x40000, WS_STATS)
            XV = OWN
            for i in range(2):
                for nb in range(4):
                    for u in range(2):
                        pr = P + i*8 + nb*2 + u
                        k.e(f'v_lshlrev_b32 v{XV + i*16 + nb*4 + 2*u}, 16, v{pr}')
                        k.e(f'v_and_b32 v{XV + i*16 + nb*4 + 2*u + 1}, 0xffff0000, v{pr}')
            M_ = PR
            for i in range(2):
                a = M_ + i
                k.e(f'v_add_f32 v{a}, v{XV + i*16}, v{XV + i*16 + 1}')
                for j in range(2, 16): k.e(f'v_add_f32 v{a}, v{a}, v{XV + i*16 + j}')
            for i in range(2): xor16_sum(k, M_ + i, M_ + 4 + i)
            for i in range(2): xor32_sum(k, M_ + i, M_ + 4 + i)
            for i in range(2): k.e(f'v_mul_f32 v{M_ + i}, {f32(1/64)}, v{M_ + i}')
            for i in range(2):
                a = M_ + 2 + i
                for j in range(16):
                    k.e(f'v_sub_f32 v{M_ + 6}, v{XV + i*16 + j}, v{M_ + i}')
                    if j == 0: k.e(f'v_mul_f32 v{a}, v{M_ + 6}, v{M_ + 6}')
                    else: k.e(f'v_fmac_f32 v{a}, v{M_ + 6}, v{M_ + 6}')
            for i in range(2): xor16_sum(k, M_ + 2 + i, M_ + 4 + i)
            for i in range(2): xor32_sum(k, M_ + 2 + i, M_ + 4 + i)
            k.e('v_and_b32 v6, 1, v4\nv_cmp_eq_u32 vcc, 1, v6')
            k.e(f'v_cndmask_b32 v{M_ + 8}, v{M_}, v{M_ + 1}, vcc')
            k.e(f'v_cndmask_b32 v{M_ + 9}, v{M_ + 2}, v{M_ + 3}, vcc')
            k.e('v_lshlrev_b32 v6, 7, v6\nv_lshl_add_u32 v6, v5, 3, v6\ns_lshl_b32 s42, s32, 8\nv_add_u32 v6, s42, v6')
            k.e('s_lshl_b32 s42, s39, 4\ns_lshl_b32 s43, s40, 1\ns_add_u32 s43, s43, s41\ns_add_u32 s43, s43, s42\ns_lshl_b32 s43, s43, 10')
            k.e('s_mov_b64 s[52:53], exec\ns_mov_b32 exec_lo, -1\ns_mov_b32 exec_hi, 0')
            k.e(f'buffer_store_dwordx2 v[{M_ + 8}:{M_ + 9}], v6, s[60:63], s43 offen sc1')
            k.e('s_mov_b64 exec, s[52:53]')
            for j in range(16):
                k.e(f'v_add_f32 v{SCP + j}, v{SCP + j}, v{SCP + 16 + j}')
                k.e(f'v_add_f32 v{SHP + j}, v{SHP + j}, v{SHP + 16 + j}')
            for j in range(0, 16, 2):
                bf16_round(k, SCP + j, SCP + j + 1, T)
                bf16_round(k, SHP + j, SHP + j + 1, T)
            for j in range(16): k.e(f'v_add_f32 v{SCP + j}, 1.0, v{SCP + j}')
            for j in range(0, 16, 2): bf16_round(k, SCP + j, SCP + j + 1, T)
            k.e('s_waitcnt vmcnt(0)')
            k.e('s_barrier')
            k.stamp(9)
            k.e(f's_cmp_lg_u32 s32, 0\ns_cbranch_scc1 L_{name}_polled2')
            k.e('s_lshl_b32 s42, s39, 2\ns_add_u32 s42, s42, 128\nv_mov_b32 v7, s42\nv_mov_b32 v2, 1')
            k.e('s_mov_b64 s[52:53], exec\ns_mov_b64 exec, 1')
            k.e('global_atomic_add v2, v7, v2, s[10:11] sc0')
            k.e('s_waitcnt vmcnt(0)')
            k.e('v_readfirstlane_b32 s46, v2')
            k.e(f's_cmp_ge_u32 s46, 15\ns_cbranch_scc1 L_{name}_pdone2')
            k.e('s_mov_b32 s47, 0x400000')
            k.label(f'L_{name}_poll2')
            k.e('global_load_dword v2, v7, s[10:11] sc1')
            k.e('s_waitcnt vmcnt(0)')
            k.e('v_readfirstlane_b32 s46, v2')
            k.e('s_sub_u32 s47, s47, 1')
            k.e(f's_cmp_eq_u32 s47, 0\ns_cbranch_scc1 L_{name}_pdone2')
            k.e(f's_cmp_lt_u32 s46, 16\ns_cbranch_scc1 L_{name}_poll2')
            k.label(f'L_{name}_pdone2')
            k.e('s_mov_b64 exec, s[52:53]')
            k.label(f'L_{name}_polled2')
            k.e('s_barrier')
            k.stamp(10)
            ST = PR
            k.e('s_lshl_b32 s42, s39, 14')
            for sl in range(16):
                if sl and sl % 4 == 0: k.e('s_add_u32 s42, s42, 4096')
                k.e(f'buffer_load_dwordx2 v[{ST + 2*sl}:{ST + 2*sl + 1}], v6, s[60:63], s42 offen offset:{(sl % 4)*1024} sc1')
            k.e('s_waitcnt vmcnt(0)')
            A_ = T; B_ = T + 1
            k.e(f'v_add_f32 v{A_}, v{ST}, v{ST + 2}')
            for sl in range(2, 16): k.e(f'v_add_f32 v{A_}, v{A_}, v{ST + 2*sl}')
            k.e(f'v_mul_f32 v{A_}, {f32(1/16)}, v{A_}')
            k.e(f'v_add_f32 v{B_}, v{ST + 1}, v{ST + 3}')
            for sl in range(2, 16): k.e(f'v_add_f32 v{B_}, v{B_}, v{ST + 2*sl + 1}')
            for sl in range(16): k.e(f'v_sub_f32 v{ST + 2*sl}, v{ST + 2*sl}, v{A_}')
            k.e(f'v_mul_f32 v{ST + 1}, v{ST}, v{ST}')
            for sl in range(1, 16): k.e(f'v_fmac_f32 v{ST + 1}, v{ST + 2*sl}, v{ST + 2*sl}')
            k.e(f'v_mov_b32 v{ST + 3}, {f32(64.0)}')
            k.e(f'v_fmac_f32 v{B_}, v{ST + 1}, v{ST + 3}')
            k.e(f'v_mul_f32 v{B_}, {f32(1/1024)}, v{B_}\nv_add_f32 v{B_}, {f32(1e-5)}, v{B_}\nv_rsq_f32 v{B_}, v{B_}')
            k.e(f'v_mov_b32 v{ST}, v{A_}\nv_mov_b32 v{ST + 1}, v{B_}')
            k.e(f'v_permlane16_swap_b32 v{A_}, v{ST}\nv_permlane16_swap_b32 v{B_}, v{ST + 1}')
            mean = [A_, ST]; rstd = [B_, ST + 1]
            for i in range(2):
                for j in range(16):
                    x = XV + i*16 + j
                    k.e(f'v_sub_f32 v{x}, v{x}, v{mean[i]}')
                    k.e(f'v_mul_f32 v{x}, v{x}, v{rstd[i]}')
                    k.e(f'v_fma_f32 v{x}, v{x}, v{SCP + j}, v{SHP + j}')
                for j in range(0, 16, 2): k.e(f'v_cvt_pk_bf16_f32 v{P + i*8 + j//2}, v{XV + i*16 + j}, v{XV + i*16 + j + 1}')
            srd(k, 28, 4, 5, SZ_ACTV, WS_H2)
            k.e('s_mov_b32 s42, s56')
            for i in range(2):
                for p in range(2):
                    r = P + i*8 + p*4
                    k.e(f'buffer_store_dwordx4 v[{r}:{r+3}], v3, s[28:31], s42 offen offset:{p*1024}')
                if i == 0: k.e('s_add_u32 s42, s42, 0x8000')
    else:
        for i in range(2):
            for p in range(2):
                r = P + i*8 + p*4
                for u in range(2): k.e(f'v_permlane32_swap_b32 v{r+u}, v{r+2+u}')
                k.e('s_nop 0')
                for u in range(2): k.e(f'v_permlane16_swap_b32 v{r+u}, v{r+2+u}')
        k.e('v_lshlrev_b32 v6, 11, v5\nv_lshl_add_u32 v6, v4, 4, v6')
        k.e('s_lshl_b32 s42, s39, 18\ns_lshl_b32 s43, s32, 16\ns_add_u32 s42, s42, s43\ns_lshl_b32 s43, s40, 8\ns_add_u32 s42, s42, s43\ns_lshl_b32 s43, s41, 7\ns_add_u32 s42, s42, s43')
        for i in range(2):
            for p in range(2):
                r = P + i*8 + p*4
                k.e(f'buffer_store_dwordx4 v[{r}:{r+3}], v6, s[28:31], s42 offen offset:{p*64}')
            if i == 0: k.e('s_add_u32 s42, s42, 0x8000')
    if Kern.stamps:
        k.stamp(5); k.e('s_waitcnt vmcnt(0)'); k.stamp(6); k.flush_stamps(32)
    k.label(f'L_{name}_end')
    k.e('s_endpgm')
    return k.finish(vgpr=228 if LN else 196, agpr=128, sgpr=64)
```

```python
from common import *

class It:
    __slots__ = ('text', 'cost', 'kind', 'tag', 'rel', 'dl', 'deps', 'stream', 'gap', 'wvm', 'wlg', 'hard', 'idx')
    def __init__(self, text, cost=4, kind='light', tag=None, rel=0, dl=10**9, deps=(), stream=None, wvm=None, wlg=None):
        self.text = text; self.cost = cost; self.kind = kind; self.tag = tag
        self.rel = rel; self.dl = dl; self.deps = list(deps); self.stream = stream
        self.gap = None; self.wvm = wvm; self.wlg = wlg; self.hard = None; self.idx = 0
def vmem(text, tag, rel=0, dl=10**9, stream='vm', deps=()): return It(text, 8, 'vmem', tag, rel, dl, deps, stream)
def dsr(text, tag, rel=0, dl=10**9, stream='ds', deps=()): return It(text, 4, 'ds', tag, rel, dl, deps, stream)
def light(text, rel=0, dl=10**9, stream=None, cost=4, deps=()): return It(text, cost, 'light', None, rel, dl, deps, stream)
def wait(wvm=None, wlg=None): return It(None, 4, 'wait', None, wvm=wvm, wlg=wlg)

class Emitter:
    def __init__(self, k):
        self.k = k; self.vm = Counter(); self.lg = Counter()
    def emit(self, it):
        k = self.k
        if it.kind == 'wait':
            w = []
            def cnt(c, tags):
                if tags is None: return None
                if not isinstance(tags, list): tags = [tags]
                vals = [c.count_after(t) for t in tags]
                vals = [v for v in vals if v is not None]
                return min(vals) if vals else None
            a = cnt(self.vm, it.wvm); b = cnt(self.lg, it.wlg)
            if a is not None: w.append(f'vmcnt({min(a, 63)})')
            if b is not None: w.append(f'lgkmcnt({min(b, 15)})')
            if w: k.e('s_waitcnt ' + ' '.join(w))
            return
        k.e(it.text)
        if it.kind == 'vmem' and it.tag is not None: self.vm.issue(it.tag)
        if it.kind == 'ds': self.lg.issue(it.tag)

def gap_cost(seq):
    t = 8; nmem = 0; seen_valu = False; prev_mem = ''
    for it in seq:
        if it.kind in ('ds', 'vmem'):
            base = 4 if it.kind == 'ds' else 8
            if nmem and it.kind == 'ds': base += 4 if ('tr' in it.text and 'tr' in prev_mem) else 8
            if seen_valu: base += 8
            t += base; nmem += 1; prev_mem = it.text
        else:
            t += it.cost
            if it.kind == 'light' and it.text and it.text.startswith('v_'): seen_valu = True
    return max(16, t)

_CACHE = {}
def schedule(em, mfmas, pinned, items, verbose=False, vm_space=1, optimize=0):
    n = len(mfmas)
    for g, lst in list(pinned.items()):
        merged = []
        for it in lst:
            if it.kind == 'wait' and merged and merged[-1].kind == 'wait':
                p = merged[-1]
                def cat(a, b):
                    if a is None: return b
                    if b is None: return a
                    a = a if isinstance(a, list) else [a]; b = b if isinstance(b, list) else [b]
                    return a + b
                merged[-1] = wait(cat(p.wvm, it.wvm), cat(p.wlg, it.wlg))
            else: merged.append(it)
        pinned[g] = merged
    streams = {}
    for i, it in enumerate(items):
        key = it.stream if it.stream is not None else ('_', i)
        it.stream = key
        streams.setdefault(key, []).append(it)
    heads = {s: 0 for s in streams}
    total = 0; last_vm = -10
    out = []
    def avail(it, g, same_gap_ok=False):
        if it.rel > g: return False
        for d in it.deps:
            if d.gap is None or d.gap >= g: return False
        return True
    def cands(g):
        return [streams[s][heads[s]] for s in streams if heads[s] < len(streams[s]) and avail(streams[s][heads[s]], g)]
    G = [[] for _ in range(n)]
    for s_, lst in streams.items():
        for i, it in enumerate(lst): it.idx = i
    for g in range(n):
        pin = pinned.get(g + 1, [])
        budget = 8 - sum(p.cost for p in pin)
        mem = []; oth = []
        def take(it):
            it.gap = g; heads[it.stream] += 1
            (mem if it.kind in ('ds', 'vmem') else oth).append(it)
        def used(): return sum(4 if i.kind == 'ds' else (8 if i.kind == 'vmem' else i.cost) for i in mem + oth)
        while True:
            f = [c for c in cands(g) if c.dl <= g]
            if not f: break
            take(min(f, key=lambda c: c.dl))
        while used() < budget:
            cs = cands(g); rem = budget - used()
            if not cs: break
            ds = [c for c in cs if c.kind == 'ds'] if not mem else []
            vm = [c for c in cs if c.kind == 'vmem'] if (not mem and not oth and rem >= 8 and g - last_vm >= vm_space) else []
            li = [c for c in cs if c.kind not in ('ds', 'vmem') and c.cost <= rem]
            pool = ds + vm + li
            if not pool: break
            pick = min(pool, key=lambda c: (c.dl, -c.cost))
            if pick.kind not in ('ds', 'vmem') and pick.cost == 4 and rem >= 8:
                if ds: take(min(ds, key=lambda c: c.dl)); take(pick); continue
                others = [c for c in li if c is not pick and c.cost == 4]
                st = streams[pick.stream]; h = heads[pick.stream]
                nxt_same = st[h+1] if h + 1 < len(st) else None
                same_ok = nxt_same is not None and nxt_same.cost == 4 and nxt_same.kind == 'light' and nxt_same.rel <= g and all(d.gap is not None and d.gap < g for d in nxt_same.deps)
                if not others and not same_ok:
                    big = [c for c in li if c.cost == 8] + vm
                    if big: pick = min(big, key=lambda c: c.dl)
            take(pick)
        if any(i.kind == 'vmem' for i in mem): last_vm = g
        G[g] = mem + oth
    def seq_of(lst):
        rem = list(lst); out_ = []
        while rem:
            ready = [x for x in rem if not any(y.stream == x.stream and y.idx < x.idx for y in rem)]
            mem = [x for x in ready if x.kind in ('ds', 'vmem')]
            if mem: pick = mem[0]
            else:
                unb = [x for x in ready if any(y.stream == x.stream and y.idx > x.idx and y.kind in ('ds', 'vmem') for y in rem)]
                pick = unb[0] if unb else ready[0]
            out_.append(pick); rem.remove(pick)
        return out_
    def cost_of(g, lst): return gap_cost(seq_of(lst) + list(pinned.get(g + 1, [])))
    if optimize:
        import random
        rnd = random.Random(12345)
        placed = [it for g in range(n) for it in G[g]]
        users = {}
        for it in placed:
            for d in it.deps: users.setdefault(id(d), []).append(it)
        C = [cost_of(g, G[g]) for g in range(n)]
        def window(it):
            lo = it.rel; hi = min(n - 1, it.hard if it.hard is not None else it.dl)
            st = streams[it.stream]
            if it.idx > 0 and st[it.idx - 1].gap is not None: lo = max(lo, st[it.idx - 1].gap)
            if it.idx + 1 < len(st):
                nx = st[it.idx + 1]
                if nx.gap is not None and nx.gap < n: hi = min(hi, nx.gap)
            for d in it.deps:
                if d.gap is not None: lo = max(lo, d.gap + 1)
            for u in users.get(id(it), []):
                if u.gap is not None: hi = min(hi, u.gap - 1)
            return lo, hi
        def vm_ok(it, g2):
            if it.kind != 'vmem': return True
            for o in placed:
                if o is not it and o.kind == 'vmem' and abs(o.gap - g2) < vm_space: return False
            return True
        for iter_ in range(optimize):
            it = rnd.choice(placed)
            lo, hi = window(it)
            if hi <= lo: continue
            g1 = it.gap; g2 = rnd.randint(lo, hi)
            if g2 == g1 or not vm_ok(it, g2): continue
            l1 = [x for x in G[g1] if x is not it]; l2 = G[g2] + [it]
            c1 = cost_of(g1, l1); c2 = cost_of(g2, l2)
            d = c1 + c2 - C[g1] - C[g2]
            if d < 0 or (d == 0 and rnd.random() < 0.5):
                G[g1] = l1; G[g2] = l2; C[g1] = c1; C[g2] = c2; it.gap = g2
    for g in range(n):
        for it in pinned.get(g, []): out.append(it)
        out.append(mfmas[g])
        out += seq_of(G[g])
        total += cost_of(g, G[g])
    left = []
    for s, lst in streams.items(): left += lst[heads[s]:]
    for it in left:
        it.gap = n; out.append(it)
    total += sum(it.cost for it in left)
    for it in pinned.get(n, []): out.append(it)
    for o in out:
        if isinstance(o, str): em.k.e(o)
        else: em.emit(o)
    if verbose: print(f'[sched] {n} mfma, model {total} cycles, leftovers {len(left)}')
    return total

def pace(lst, rel, dl):
    n = len(lst)
    for i, it in enumerate(lst):
        it.rel = max(it.rel, 0) if it.rel > rel else rel
        it.dl = int(round(rel + (dl - rel) * (i + 1) / n))
    return lst

def spread(lst, start, step, slack=None):
    slack = step - 1 if slack is None else slack
    pos = start
    out = list(lst)
    nxt = [None]*len(out)
    p = start
    for i, it in enumerate(out):
        if it.kind == 'vmem':
            it.rel = p; it.dl = p + slack; p += step
    last = None
    for i in range(len(out) - 1, -1, -1):
        it = out[i]
        if it.kind == 'vmem': last = it
        else:
            if last is not None: it.rel = max(0, last.rel - 3); it.dl = last.rel
            else: it.rel = p - step + 1; it.dl = p + 4
    return out
```

```python
from common import *
from k_prep2 import MODP, MODSZ, bf16_round
from sched import *
WS_XCH = 0x3000000
WS_STATS = 0x3800000

def kern_gemm2(which, opts=None, suffix=''):
    opts = opts or {}
    name = f'{which}{suffix}_kernel'
    k = Kern(name); k.kidx = opts.get('kidx', 0)
    if which == 'wo':
        KD_, act_off, wptr, gidx = 4096, WS_O, A_WO, 2
    else:
        KD_, act_off, wptr, gidx = 3584, WS_ACT, A_WD, 5
    nks = KD_ // 32
    nst = nks // 4
    AV = 8; WD = 10; VA = 16; WF = 24; ACT = 64; XR = 128; GV = 144; T = 176
    AD = opts.get('AD', 3)
    LN = (which == 'wo' and opts.get('ln', True))
    SCP = 24; SHP = 196
    k.e(f's_cmp_ge_u32 s2, 256\ns_cbranch_scc1 L_{name}_end')
    k.e(f's_load_dwordx2 s[4:5], s[0:1], {A_WS}')
    k.e(f's_load_dwordx2 s[6:7], s[0:1], {wptr}')
    k.e(f's_load_dwordx2 s[8:9], s[0:1], {A_X if which == "wo" else A_OUT}')
    k.e(f's_load_dwordx2 s[10:11], s[0:1], {A_DBG}')
    k.stamp(0)
    k.e('v_lshrrev_b32 v2, 6, v0\nv_and_b32 v1, 63, v0\nv_readfirstlane_b32 s32, v2')
    k.e('s_and_b32 s37, s2, 7\ns_lshr_b32 s38, s2, 3')
    if opts.get('xmap', 1) == 0:
        k.e('s_and_b32 s41, s38, 1')
        k.e('s_lshr_b32 s39, s37, 1\ns_lshl_b32 s39, s39, 2\ns_lshr_b32 s40, s38, 3\ns_add_u32 s39, s39, s40')
        k.e('s_and_b32 s40, s37, 1\ns_lshl_b32 s40, s40, 2\ns_bfe_u32 s42, s38, 0x20001\ns_add_u32 s40, s40, s42')
    else:
        k.e('s_and_b32 s41, s37, 1')
        k.e('s_lshr_b32 s39, s37, 1\ns_lshl_b32 s39, s39, 2\ns_lshr_b32 s40, s38, 3\ns_add_u32 s39, s39, s40')
        k.e('s_and_b32 s40, s38, 7')
    k.e('s_lshl_b32 s44, s39, 3\ns_add_u32 s44, s44, s40')
    k.e('s_lshl_b32 s35, s32, 12')
    k.e('v_lshrrev_b32 v4, 4, v1\nv_and_b32 v5, 15, v1\nv_lshlrev_b32 v3, 4, v1')
    k.e(f'v_mov_b32 v{AV}, v3\nv_add_u32 v{AV+1}, {nks*1024}, v3')
    k.e(f's_lshl_b32 s33, s39, 3\ns_lshl_b32 s42, s32, 1\ns_add_u32 s33, s33, s42\ns_mul_i32 s33, s33, {nks*1024}')
    k.e(f's_mul_i32 s42, s41, {nks*512}\ns_add_u32 s33, s33, s42')
    for n in range(4):
        k.e(f'v_add_u32 v6, {4*n}, v4\nv_and_b32 v7, 7, v6')
        k.e('v_lshrrev_b32 v2, 1, v5\nv_xor_b32 v7, v7, v2\nv_lshlrev_b32 v7, 5, v7')
        k.e('v_and_b32 v2, 1, v5\nv_lshl_add_u32 v7, v2, 4, v7')
        k.e(f'v_lshl_add_u32 v7, v6, 11, v7\nv_subrev_u32 v{WD+n}, {1024*n}, v7')
    k.e(f's_mul_i32 s34, s41, {KD_//2*2048}\ns_lshl_b32 s42, s32, 15\ns_add_u32 s34, s34, s42\ns_lshl_b32 s42, s40, 8\ns_add_u32 s34, s34, s42')
    k.e('v_bfe_u32 v6, v1, 2, 2\nv_lshl_add_u32 v6, v4, 2, v6\nv_and_b32 v7, 7, v6')
    k.e('v_lshlrev_b32 v7, 5, v7\nv_lshl_add_u32 v7, v6, 8, v7\nv_and_b32 v6, 3, v1\nv_lshl_add_u32 v7, v6, 3, v7')
    k.e('s_lshl_b32 s42, s41, 7\nv_xor_b32 v7, s42, v7')
    for nb in range(8): k.e(f'v_xor_b32 v{VA+nb}, {nb*32}, v7')
    k.e('s_waitcnt lgkmcnt(0)')
    srd(k, 12, 4, 5, 2048*KD_*2, act_off)
    srd(k, 16, 6, 7, KD_*2048)
    srd(k, 20, 4, 5, MODSZ, WS_MOD)
    if which == 'wo':
        srd(k, 24, 8, 9, SZ_ACTV); srd(k, 28, 4, 5, SZ_ACTV, WS_X1)
    else:
        srd(k, 24, 4, 5, SZ_ACTV, WS_X1); srd(k, 28, 8, 9, SZ_ACTV)
    srd(k, 48, 4, 5, 0x800000, WS_XCH)
    em = Emitter(k)
    FR = 64
    PD = opts.get('PD', 4)
    def dmaW(s, rel=0, dl=10**9):
        st = 'vmW'
        out = [light(f's_add_u32 m0, s35, {(s & 3)*16384}', rel, dl, st)]
        for p in range(4):
            if opts.get('noW') and s >= 4: continue
            out.append(vmem(f'buffer_load_dwordx4 v{WD+p}, s[16:19], s34 offen offset:{1024*p} lds', ('W', s), rel, dl, st))
        out.append(light(f's_add_u32 s34, s34, {64*2048}', rel, dl, st))
        return out
    def loadA(s, rel=0, dl=10**9):
        st = 'vmA'; out = []
        for kk in range(2):
            for i in range(2):
                b = ACT + 16*(s % 4) + 8*kk + 4*i
                if opts.get('noA') and s >= 4: continue
                out.append(vmem(f'buffer_load_dwordx4 v[{b}:{b+3}], v{AV+i}, s[12:15], s33 offen offset:{kk*1024}', ('A', s), rel, dl, st))
        out.append(light('s_add_u32 s33, s33, 2048', rel, dl, st))
        return out
    def rdW(gi, rel=0, dl=10**9):
        s, nb = divmod(gi, 8)
        buf = FR + 8*(gi % 8)
        base = (s & 3)*16384
        if opts.get('noR') and gi >= 32: return []
        return [dsr(f'ds_read_b64_tr_b16 a[{buf+4*kk+2*t}:{buf+4*kk+2*t+1}], v{VA+nb} offset:{base + kk*8192 + t*4096}', ('R', gi), rel, dl, 'ds') for kk in range(2) for t in range(2)]
    def emit_now(lst):
        for it in lst: em.emit(it)
    WDIST = opts.get('WDIST', 3)
    emit_now(dmaW(0)); emit_now(loadA(0)); emit_now(dmaW(1)); emit_now(loadA(1))
    em.emit(wait(wvm=('W', 0)))
    k.e('s_barrier')
    k.stamp(1)
    for gi in range(PD): emit_now(rdW(gi))
    def epi_loads():
        out = []
        out.append(light('v_lshlrev_b32 v2, 4, v4', stream='epi'))
        out.append(light(f's_lshl_b32 s42, s40, 9\ns_lshl_b32 s43, s41, 8\ns_add_u32 s42, s42, s43\ns_add_u32 s42, s42, {gidx*4096}', stream='epi'))
        for pp in range(2):
            for nb in range(4):
                out.append(vmem(f'buffer_load_dwordx4 v[{GV+16*pp+4*nb}:{GV+16*pp+4*nb+3}], v2, s[20:23], s42 offen offset:{nb*64}', 'epi', stream='epi'))
            if pp == 0: out.append(light(f's_add_u32 s42, s42, {MODP}', stream='epi'))
        if LN:
            for idx, R0 in ((4, SCP), (3, SHP)):
                out.append(light(f's_lshl_b32 s42, s40, 9\ns_lshl_b32 s43, s41, 8\ns_add_u32 s42, s42, s43\ns_add_u32 s42, s42, {idx*4096}', stream='epi'))
                for pp in range(2):
                    for nb in range(4):
                        out.append(vmem(f'buffer_load_dwordx4 v[{R0+16*pp+4*nb}:{R0+16*pp+4*nb+3}], v2, s[20:23], s42 offen offset:{nb*64}', 'epi', stream='epi'))
                    if pp == 0: out.append(light(f's_add_u32 s42, s42, {MODP}', stream='epi'))
        if which == 'wo':
            out.append(light('v_lshlrev_b32 v6, 11, v5\nv_lshl_add_u32 v6, v4, 3, v6', stream='epi'))
            out.append(light('s_lshl_b32 s42, s39, 18\ns_lshl_b32 s43, s32, 16\ns_add_u32 s42, s42, s43\ns_lshl_b32 s43, s40, 8\ns_add_u32 s42, s42, s43\ns_lshl_b32 s43, s41, 7\ns_add_u32 s42, s42, s43', stream='epi'))
            for i in range(2):
                for nb in range(4):
                    out.append(vmem(f'buffer_load_dwordx2 v[{XR+8*i+2*nb}:{XR+8*i+2*nb+1}], v6, s[24:27], s42 offen offset:{nb*32}', 'epi', stream='epi'))
                if i == 0: out.append(light('s_add_u32 s42, s42, 0x8000', stream='epi'))
        else:
            out.append(light('s_lshl_b32 s42, s39, 18\ns_lshl_b32 s43, s32, 16\ns_add_u32 s42, s42, s43\ns_lshl_b32 s43, s40, 12\ns_add_u32 s42, s42, s43\ns_lshl_b32 s43, s41, 11\ns_add_u32 s42, s42, s43', stream='epi'))
            for i in range(2):
                for p in range(2):
                    out.append(vmem(f'buffer_load_dwordx4 v[{XR+8*i+4*p}:{XR+8*i+4*p+3}], v3, s[24:27], s42 offen offset:{p*1024}', 'epi', stream='epi'))
                if i == 0: out.append(light('s_add_u32 s42, s42, 0x8000', stream='epi'))
        return out
    def segment(g0, g1, NG, NS, extra=None, first=False):
        mf = []; pinned = {}; items = []
        if first:
            items += spread(dmaW(2), 1, 2, 1)
            for s in range(2, AD): items += spread(loadA(s), 2, 3, 1)
        for gi in range(g0, g1):
            s, nb = divmod(gi, 8)
            m0 = 4*(gi - g0)
            pin = []
            if gi % 2 == 0:
                pin.append(wait(wvm=('A', s) if nb == 0 else None, wlg=('R', min(gi + 1, NG - 1))))
            nxt = gi + PD
            if nxt < NG:
                if nxt % 8 == 0:
                    pin += [wait(wvm=('W', nxt // 8)), It('s_barrier', 4, 'light')]
                rr = rdW(nxt)
                for it, p in zip(rr, (0, 2, 2, 3)): it.rel = it.dl = m0 + p
                items += rr
            if pin: pinned[m0] = pin
            if nb == 0:
                if s + AD < NS: items += spread(loadA(s + AD), m0 + (1 if not (first and s == 0) else 13), 4, 0)
                if s + WDIST < NS: items += spread(dmaW(s + WDIST), m0 + 4*(8 - PD) + 1, 4, 0)
            buf = FR + 8*(gi % 8)
            for q in range(4):
                i, kk = q >> 1, q & 1
                acc = (nb*2 + i)*4
                ab = ACT + 16*(s % 4) + 8*kk + 4*i
                c = '0' if (first and s == 0 and kk == 0) else f'a[{acc}:{acc+3}]'
                mf.append(f'v_mfma_f32_16x16x32_bf16 a[{acc}:{acc+3}], a[{buf+4*kk}:{buf+4*kk+3}], v[{ab}:{ab+3}], {c}')
        if extra:
            items += spread(extra, 30, 2, 1)
        return schedule(em, mf, pinned, items, verbose=opts.get('verbose', False), vm_space=3)
    BIG = 10**9
    segment(0, 32, BIG, BIG, first=True)
    if opts.get('fine'): k.stamp(7)
    k.e(f's_mov_b32 s36, {nst//4 - 2}')
    emit_loop(k, f'L_{name}_loop', lambda t: segment(32*(t+1), 32*(t+2), BIG, BIG))
    k.e(f's_sub_u32 s36, s36, 1\ns_cmp_lg_u32 s36, 0\ns_cbranch_scc1 L_{name}_loop')
    if opts.get('fine'): k.stamp(8)
    segment(96, 128, 128, 16, epi_loads())
    k.stamp(2)
    srd(k, 16, 4, 5, SZ_FLAG, WS_FLAG)
    k.e('s_lshl_b32 s42, s44, 1\ns_add_u32 s43, s42, s41\ns_lshl_b32 s43, s43, 2\ns_add_u32 s43, s43, s32\ns_lshl_b32 s43, s43, 13')
    k.e('s_xor_b32 s45, s41, 1\ns_add_u32 s45, s42, s45\ns_lshl_b32 s45, s45, 2\ns_add_u32 s45, s45, s32\ns_lshl_b32 s45, s45, 13')
    for b in range(8):
        acc = (8 + b)*4
        if b == 4: k.e('s_add_u32 s43, s43, 4096')
        k.e(f'buffer_store_dwordx4 a[{acc}:{acc+3}], v3, s[48:51], s43 offen offset:{(b%4)*1024} sc1')
    OWN = ACT
    for i in range(32): k.e(f'v_accvgpr_read_b32 v{OWN+i}, a{i}')
    k.e('s_waitcnt vmcnt(0)')
    k.e('s_barrier')
    k.stamp(3)
    k.e(f's_cmp_lg_u32 s32, 0\ns_cbranch_scc1 L_{name}_polled')
    fb = FL_WO if which == 'wo' else FL_DOWN
    k.e(f's_lshl_b32 s42, s44, 1\ns_add_u32 s46, s42, s41\ns_lshl_b32 s46, s46, 7\ns_add_u32 s46, s46, {fb}')
    k.e(f's_xor_b32 s47, s41, 1\ns_add_u32 s47, s42, s47\ns_lshl_b32 s47, s47, 7\ns_add_u32 s47, s47, {fb}')
    k.e('v_mov_b32 v6, 0\nv_mov_b32 v7, 1')
    k.e('s_mov_b64 s[52:53], exec\ns_mov_b64 exec, 1')
    k.e('buffer_store_dword v7, v6, s[16:19], s46 offen sc1')
    k.e('s_mov_b32 s54, 0x400000')
    k.label(f'L_{name}_poll')
    k.e('buffer_load_dword v7, v6, s[16:19], s47 offen sc1')
    k.e('s_waitcnt vmcnt(0)')
    k.e('v_readfirstlane_b32 s46, v7')
    k.e('s_sub_u32 s54, s54, 1')
    k.e(f's_cmp_eq_u32 s54, 0\ns_cbranch_scc1 L_{name}_pdone')
    k.e(f's_cmp_lg_u32 s46, 1\ns_cbranch_scc1 L_{name}_poll')
    k.label(f'L_{name}_pdone')
    k.e('s_mov_b64 exec, s[52:53]')
    k.label(f'L_{name}_polled')
    k.e('s_barrier')
    k.stamp(4)
    PR = ACT + 32
    for b in range(8):
        if b == 4: k.e('s_add_u32 s45, s45, 4096')
        k.e(f'buffer_load_dwordx4 v[{PR+4*b}:{PR+4*b+3}], v3, s[48:51], s45 offen offset:{(b%4)*1024} sc1')
    for i in range(16): k.e(f'v_add_f32 v{GV+i}, v{GV+i}, v{GV+16+i}')
    for i in range(0, 16, 2): bf16_round(k, GV+i, GV+i+1, T)
    k.e('s_waitcnt vmcnt(0)')
    for i in range(32): k.e(f'v_add_f32 v{OWN+i}, v{OWN+i}, v{PR+i}')
    P = T + 2
    for i in range(2):
        for nb in range(4):
            for u in range(2):
                xr = XR + 8*i + 2*nb + u
                o = OWN + (nb*2 + i)*4 + 2*u
                k.e(f'v_lshlrev_b32 v{T}, 16, v{xr}')
                k.e(f'v_and_b32 v{T+1}, 0xffff0000, v{xr}')
                k.e(f'v_fma_f32 v{o}, v{o}, v{GV+4*nb+2*u}, v{T}')
                k.e(f'v_fma_f32 v{o+1}, v{o+1}, v{GV+4*nb+2*u+1}, v{T+1}')
                k.e(f'v_cvt_pk_bf16_f32 v{P + i*8 + nb*2 + u}, v{o}, v{o+1}')
    if which == 'wo':
        k.e('s_lshl_b32 s42, s39, 18\ns_lshl_b32 s43, s32, 16\ns_add_u32 s42, s42, s43\ns_lshl_b32 s43, s40, 12\ns_add_u32 s42, s42, s43\ns_lshl_b32 s43, s41, 11\ns_add_u32 s56, s42, s43')
        k.e('s_mov_b32 s42, s56')
        for i in range(2):
            for p in range(2):
                r = P + i*8 + p*4
                k.e(f'buffer_store_dwordx4 v[{r}:{r+3}], v3, s[28:31], s42 offen offset:{p*1024}')
            if i == 0: k.e('s_add_u32 s42, s42, 0x8000')
        if LN:
            srd(k, 60, 4, 5, 0x40000, WS_STATS)
            XV = OWN
            for i in range(2):
                for nb in range(4):
                    for u in range(2):
                        pr = P + i*8 + nb*2 + u
                        k.e(f'v_lshlrev_b32 v{XV + i*16 + nb*4 + 2*u}, 16, v{pr}')
                        k.e(f'v_and_b32 v{XV + i*16 + nb*4 + 2*u + 1}, 0xffff0000, v{pr}')
            M_ = PR
            for i in range(2):
                a = M_ + i
                k.e(f'v_add_f32 v{a}, v{XV + i*16}, v{XV + i*16 + 1}')
                for j in range(2, 16): k.e(f'v_add_f32 v{a}, v{a}, v{XV + i*16 + j}')
            for i in range(2): xor16_sum(k, M_ + i, M_ + 4 + i)
            for i in range(2): xor32_sum(k, M_ + i, M_ + 4 + i)
            for i in range(2): k.e(f'v_mul_f32 v{M_ + i}, {f32(1/64)}, v{M_ + i}')
            for i in range(2):
                a = M_ + 2 + i
                for j in range(16):
                    k.e(f'v_sub_f32 v{M_ + 6}, v{XV + i*16 + j}, v{M_ + i}')
                    if j == 0: k.e(f'v_mul_f32 v{a}, v{M_ + 6}, v{M_ + 6}')
                    else: k.e(f'v_fmac_f32 v{a}, v{M_ + 6}, v{M_ + 6}')
            for i in range(2): xor16_sum(k, M_ + 2 + i, M_ + 4 + i)
            for i in range(2): xor32_sum(k, M_ + 2 + i, M_ + 4 + i)
            k.e('v_and_b32 v6, 1, v4\nv_cmp_eq_u32 vcc, 1, v6')
            k.e(f'v_cndmask_b32 v{M_ + 8}, v{M_}, v{M_ + 1}, vcc')
            k.e(f'v_cndmask_b32 v{M_ + 9}, v{M_ + 2}, v{M_ + 3}, vcc')
            k.e('v_lshlrev_b32 v6, 7, v6\nv_lshl_add_u32 v6, v5, 3, v6\ns_lshl_b32 s42, s32, 8\nv_add_u32 v6, s42, v6')
            k.e('s_lshl_b32 s42, s39, 4\ns_lshl_b32 s43, s40, 1\ns_add_u32 s43, s43, s41\ns_add_u32 s43, s43, s42\ns_lshl_b32 s43, s43, 10')
            k.e('s_mov_b64 s[52:53], exec\ns_mov_b32 exec_lo, -1\ns_mov_b32 exec_hi, 0')
            k.e(f'buffer_store_dwordx2 v[{M_ + 8}:{M_ + 9}], v6, s[60:63], s43 offen sc1')
            k.e('s_mov_b64 exec, s[52:53]')
            for j in range(16):
                k.e(f'v_add_f32 v{SCP + j}, v{SCP + j}, v{SCP + 16 + j}')
                k.e(f'v_add_f32 v{SHP + j}, v{SHP + j}, v{SHP + 16 + j}')
            for j in range(0, 16, 2):
                bf16_round(k, SCP + j, SCP + j + 1, T)
                bf16_round(k, SHP + j, SHP + j + 1, T)
            for j in range(16): k.e(f'v_add_f32 v{SCP + j}, 1.0, v{SCP + j}')
            for j in range(0, 16, 2): bf16_round(k, SCP + j, SCP + j + 1, T)
            k.e('s_waitcnt vmcnt(0)')
            k.e('s_barrier')
            k.stamp(9)
            k.e(f's_cmp_lg_u32 s32, 0\ns_cbranch_scc1 L_{name}_polled2')
            k.e(f's_lshl_b32 s46, s39, 7\ns_add_u32 s46, s46, {FL_LN}')
            k.e('s_lshl_b32 s47, s40, 1\ns_add_u32 s47, s47, s41\ns_lshl_b32 s47, s47, 2\nv_mov_b32 v7, s47\nv_mov_b32 v2, 1')
            k.e('s_mov_b64 s[52:53], exec\ns_mov_b64 exec, 1')
            k.e('buffer_store_dword v2, v7, s[16:19], s46 offen sc1')
            k.e('s_mov_b64 exec, s[52:53]')
            k.e('v_lshlrev_b32 v7, 2, v1')
            k.e('s_mov_b32 exec_lo, 0xffff\ns_mov_b32 exec_hi, 0')
            k.e('s_mov_b32 s54, 0x400000')
            k.label(f'L_{name}_poll2')
            k.e('buffer_load_dword v2, v7, s[16:19], s46 offen sc1')
            k.e('s_waitcnt vmcnt(0)')
            k.e('v_cmp_ne_u32 vcc, 1, v2')
            k.e('s_sub_u32 s54, s54, 1')
            k.e(f's_cmp_eq_u32 s54, 0\ns_cbranch_scc1 L_{name}_pdone2')
            k.e(f's_cbranch_vccnz L_{name}_poll2')
            k.label(f'L_{name}_pdone2')
            k.e('s_mov_b64 exec, s[52:53]')
            k.label(f'L_{name}_polled2')
            k.e('s_barrier')
            k.stamp(10)
            ST = PR
            k.e('s_lshl_b32 s42, s39, 14')
            for sl in range(16):
                if sl and sl % 4 == 0: k.e('s_add_u32 s42, s42, 4096')
                k.e(f'buffer_load_dwordx2 v[{ST + 2*sl}:{ST + 2*sl + 1}], v6, s[60:63], s42 offen offset:{(sl % 4)*1024} sc1')
            k.e('s_waitcnt vmcnt(0)')
            A_ = T; B_ = T + 1
            k.e(f'v_add_f32 v{A_}, v{ST}, v{ST + 2}')
            for sl in range(2, 16): k.e(f'v_add_f32 v{A_}, v{A_}, v{ST + 2*sl}')
            k.e(f'v_mul_f32 v{A_}, {f32(1/16)}, v{A_}')
            k.e(f'v_add_f32 v{B_}, v{ST + 1}, v{ST + 3}')
            for sl in range(2, 16): k.e(f'v_add_f32 v{B_}, v{B_}, v{ST + 2*sl + 1}')
            for sl in range(16): k.e(f'v_sub_f32 v{ST + 2*sl}, v{ST + 2*sl}, v{A_}')
            k.e(f'v_mul_f32 v{ST + 1}, v{ST}, v{ST}')
            for sl in range(1, 16): k.e(f'v_fmac_f32 v{ST + 1}, v{ST + 2*sl}, v{ST + 2*sl}')
            k.e(f'v_mov_b32 v{ST + 3}, {f32(64.0)}')
            k.e(f'v_fmac_f32 v{B_}, v{ST + 1}, v{ST + 3}')
            k.e(f'v_mul_f32 v{B_}, {f32(1/1024)}, v{B_}\nv_add_f32 v{B_}, {f32(1e-5)}, v{B_}\nv_rsq_f32 v{B_}, v{B_}')
            k.e(f'v_mov_b32 v{ST}, v{A_}\nv_mov_b32 v{ST + 1}, v{B_}')
            k.e(f'v_permlane16_swap_b32 v{A_}, v{ST}\nv_permlane16_swap_b32 v{B_}, v{ST + 1}')
            mean = [A_, ST]; rstd = [B_, ST + 1]
            for i in range(2):
                for j in range(16):
                    x = XV + i*16 + j
                    k.e(f'v_sub_f32 v{x}, v{x}, v{mean[i]}')
                    k.e(f'v_mul_f32 v{x}, v{x}, v{rstd[i]}')
                    k.e(f'v_fma_f32 v{x}, v{x}, v{SCP + j}, v{SHP + j}')
                for j in range(0, 16, 2): k.e(f'v_cvt_pk_bf16_f32 v{P + i*8 + j//2}, v{XV + i*16 + j}, v{XV + i*16 + j + 1}')
            srd(k, 28, 4, 5, SZ_ACTV, WS_H2)
            k.e('s_mov_b32 s42, s56')
            for i in range(2):
                for p in range(2):
                    r = P + i*8 + p*4
                    k.e(f'buffer_store_dwordx4 v[{r}:{r+3}], v3, s[28:31], s42 offen offset:{p*1024}')
                if i == 0: k.e('s_add_u32 s42, s42, 0x8000')
    else:
        for i in range(2):
            for p in range(2):
                r = P + i*8 + p*4
                for u in range(2): k.e(f'v_permlane32_swap_b32 v{r+u}, v{r+2+u}')
                k.e('s_nop 0')
                for u in range(2): k.e(f'v_permlane16_swap_b32 v{r+u}, v{r+2+u}')
        k.e('v_lshlrev_b32 v6, 11, v5\nv_lshl_add_u32 v6, v4, 4, v6')
        k.e('s_lshl_b32 s42, s39, 18\ns_lshl_b32 s43, s32, 16\ns_add_u32 s42, s42, s43\ns_lshl_b32 s43, s40, 8\ns_add_u32 s42, s42, s43\ns_lshl_b32 s43, s41, 7\ns_add_u32 s42, s42, s43')
        for i in range(2):
            for p in range(2):
                r = P + i*8 + p*4
                k.e(f'buffer_store_dwordx4 v[{r}:{r+3}], v6, s[28:31], s42 offen offset:{p*64}')
            if i == 0: k.e('s_add_u32 s42, s42, 0x8000')
    if Kern.stamps:
        k.stamp(5); k.e('s_waitcnt vmcnt(0)'); k.stamp(6); k.flush_stamps(32)
    k.label(f'L_{name}_end')
    k.e('s_endpgm')
    return k.finish(vgpr=228 if LN else 196, agpr=128, sgpr=64)
```

```python
from common import *
MODP = 0x8000
MODSZ = 0x20000

def bf16_round(k, a, b, tmp):
    k.e(f'v_cvt_pk_bf16_f32 v{tmp}, v{a}, v{b}')
    k.e(f'v_lshlrev_b32 v{a}, 16, v{tmp}')
    k.e(f'v_and_b32 v{b}, 0xffff0000, v{tmp}')

def stage_mod(k, shift_i, scale_i, nparts, srd, tidv, R, flags):
    a = R + 8*nparts
    k.e(f'v_lshlrev_b32 v{a}, 4, v{tidv}')
    j = 0
    for idx in (shift_i, scale_i):
        for p in range(nparts):
            k.e(f's_mov_b32 s24, {idx*4096 + p*MODP}')
            k.e(f'buffer_load_dwordx4 v[{R+4*j}:{R+4*j+3}], v{a}, s[{srd}:{srd+3}], s24 offen {flags}')
            j += 1
def stage_mod_finish(k, qscale, nparts, R, lds_sc, lds_sh):
    a = R + 8*nparts; S0 = R; C0 = R + 4*nparts
    for p in range(1, nparts):
        for r in range(4):
            k.e(f'v_add_f32 v{S0+r}, v{S0+r}, v{S0+4*p+r}')
            k.e(f'v_add_f32 v{C0+r}, v{C0+r}, v{C0+4*p+r}')
    t = S0 + 4
    for r in (0, 2):
        bf16_round(k, S0+r, S0+r+1, t)
        bf16_round(k, C0+r, C0+r+1, t)
    for r in range(4): k.e(f'v_add_f32 v{C0+r}, 1.0, v{C0+r}')
    for r in (0, 2): bf16_round(k, C0+r, C0+r+1, t)
    if qscale:
        k.e(f's_mov_b32 s24, {f32(QSCALE)}')
        for r in range(4):
            k.e(f'v_mul_f32 v{S0+r}, s24, v{S0+r}')
            k.e(f'v_mul_f32 v{C0+r}, s24, v{C0+r}')
    k.e(f'ds_write_b128 v{a}, v[{S0}:{S0+3}] offset:{lds_sh}')
    k.e(f'ds_write_b128 v{a}, v[{C0}:{C0+3}] offset:{lds_sc}')

def ln_common(k, name, which, F, X, wg_first_wait):
    pass

def kern_lnx(which, opts=None):
    opts = opts or {}
    name = opts.get('name', 'prep_kernel' if which == 1 else 'ln2_kernel')
    k = Kern(name); k.kidx = opts.get('kidx', 0); k.sv = 2
    LSC, LSH = 4096, 8192
    X = 16; F = 32; SC = 64; SH = 96; W = 64; ACC = 48 + 80
    def gemv(crit):
        tag = 'c' if crit else 'n'
        npass = 8 if crit else 16
        rows = 32 * npass
        if crit:
            k.e(f's_cmp_ge_u32 s2, 128\ns_cbranch_scc1 L_{name}_skip{tag}')
            k.e('s_and_b32 s28, s2, 31\ns_lshr_b32 s29, s2, 5')
        else:
            k.e(f's_cmp_lt_u32 s2, 128\ns_cbranch_scc1 L_{name}_skip{tag}')
            k.e('s_sub_u32 s30, s2, 128\ns_and_b32 s28, s30, 63\ns_add_u32 s28, s28, 32\ns_lshr_b32 s29, s30, 6')
        srd(k, 40, 34, 35, 1024*6144*2)
        srd(k, 44, 6, 7, 2048)
        k.e(f'v_lshlrev_b32 v9, 2, v0\ns_mul_i32 s30, s29, {rows*2}')
        k.e('buffer_load_dword v10, v9, s[44:47], s30 offen')
        k.e('v_lshrrev_b32 v11, 3, v0')
        k.e('v_mul_u32_u24 v12, 0x3000, v11\nv_lshl_add_u32 v12, v1, 4, v12')
        k.e(f's_mul_i32 s30, s29, {rows*12288}\ns_lshl_b32 s31, s28, 7\ns_add_u32 s30, s30, s31')
        for p in range(npass):
            k.e(f'buffer_load_dwordx4 v[{W+4*p}:{W+4*p+3}], v12, s[40:43], s30 offen {opts.get("wflag", "nt")}')
            if p < npass - 1: k.e(f's_add_u32 s30, s30, {32*12288}')
        k.e(f's_waitcnt vmcnt({npass})')
        k.e('v_lshlrev_b32 v13, 16, v10\nv_and_b32 v14, 0xffff0000, v10')
        for a in (13, 14):
            k.e(f'v_mul_f32 v15, {f32(-1.4426950408889634)}, v{a}')
            k.e('v_exp_f32 v15, v15\ns_nop 0\nv_add_f32 v15, 1.0, v15\nv_rcp_f32 v15, v15\ns_nop 0')
            k.e(f'v_mul_f32 v{a}, v{a}, v15')
        bf16_round(k, 13, 14, 15)
        k.e('v_lshlrev_b32 v9, 3, v0')
        k.e('v_mov_b32 v132, v13\nv_mov_b32 v133, v14')
        k.e('ds_write_b64 v9, v[132:133]')
        k.e('s_waitcnt lgkmcnt(0)\ns_barrier')
        k.e('v_lshrrev_b32 v11, 3, v0\nv_lshlrev_b32 v9, 2, v11')
        for p in range(npass): k.e(f'ds_read_b32 v{144+p}, v9 offset:{p*128}')
        A0 = 132
        for j in range(8): k.e(f'v_mov_b32 v{A0+j}, 0')
        for p in range(npass):
            k.e(f's_waitcnt vmcnt({npass-1-p}) lgkmcnt({min(npass-1-p, 15)})')
            for q in range(4):
                w = W + 4*p + q
                k.e(f'v_lshlrev_b32 v140, 16, v{w}')
                k.e(f'v_and_b32 v141, 0xffff0000, v{w}')
                k.e(f'v_fmac_f32 v{A0+2*q}, v{144+p}, v140')
                k.e(f'v_fmac_f32 v{A0+2*q+1}, v{144+p}, v141')
        for j in range(8): xor8_sum(k, A0+j)
        for j in range(8): k.e(f'v_mov_b32 v{144+j}, v{A0+j}')
        for j in range(8): k.e(f'v_permlane16_swap_b32 v{A0+j}, v{144+j}')
        for j in range(8): k.e(f'v_add_f32 v{A0+j}, v{A0+j}, v{144+j}')
        for j in range(8): k.e(f'v_mov_b32 v{144+j}, v{A0+j}')
        for j in range(8): k.e(f'v_permlane32_swap_b32 v{A0+j}, v{144+j}')
        for j in range(8): k.e(f'v_add_f32 v{A0+j}, v{A0+j}, v{144+j}')
        k.e('v_lshlrev_b32 v9, 8, v4\nv_lshl_add_u32 v9, v1, 5, v9')
        k.e('v_and_b32 v10, 63, v0\nv_cmp_gt_u32 vcc, 8, v10')
        k.e('s_and_saveexec_b64 s[30:31], vcc')
        k.e(f'ds_write_b128 v9, v[{A0}:{A0+3}] offset:2048')
        k.e(f'ds_write_b128 v9, v[{A0+4}:{A0+7}] offset:2064')
        k.e('s_mov_b64 exec, s[30:31]')
        k.e('s_waitcnt lgkmcnt(0)\ns_barrier')
        k.e('v_cmp_gt_u32 vcc, 64, v0')
        k.e('s_and_saveexec_b64 s[30:31], vcc')
        k.e(f's_cbranch_execz L_{name}_gdone{tag}')
        k.e('v_lshlrev_b32 v9, 2, v0')
        for w in range(4): k.e(f'ds_read_b32 v{A0+w}, v9 offset:{2048 + w*256}')
        k.e('s_waitcnt lgkmcnt(0)')
        k.e(f'v_add_f32 v{A0}, v{A0}, v{A0+1}\nv_add_f32 v{A0+2}, v{A0+2}, v{A0+3}\nv_add_f32 v{A0}, v{A0}, v{A0+2}')
        k.e(f's_mul_i32 s48, s29, {MODP}\ns_lshl_b32 s49, s28, 8\ns_add_u32 s48, s48, s49')
        k.e(f'buffer_store_dword v{A0}, v9, s[12:15], s48 offen sc1')
        if crit:
            k.e('s_waitcnt vmcnt(0)')
            k.e('v_mov_b32 v9, 0\nv_mov_b32 v10, 1\nv_cmp_eq_u32 vcc, 0, v0')
            k.e('s_and_saveexec_b64 s[48:49], vcc')
            k.e('global_atomic_add v9, v10, s[36:37]')
        k.label(f'L_{name}_gdone{tag}')
        k.e('s_mov_b64 exec, s[30:31]')
        k.label(f'L_{name}_skip{tag}')
        k.e('s_mov_b64 exec, -1')
    k.e(f's_cmp_ge_u32 s2, 256\ns_cbranch_scc1 L_{name}_end')
    k.e(f's_load_dwordx2 s[8:9], s[0:1], {A_WS}')
    if which == 1:
        k.e(f's_load_dwordx2 s[4:5], s[0:1], {A_X}')
        k.e(f's_load_dwordx2 s[6:7], s[0:1], {A_C}')
        k.e(f's_load_dwordx2 s[34:35], s[0:1], {A_WMOD}')
        k.e(f's_load_dwordx2 s[36:37], s[0:1], {A_DBG}')
        k.e(f's_load_dwordx2 s[38:39], s[0:1], {A_WQ}')
    k.stamp(0)
    k.e('v_and_b32 v1, 7, v0')
    k.e('v_bfe_u32 v2, v0, 3, 2')
    k.e('v_bfe_u32 v3, v0, 5, 1')
    k.e('v_lshrrev_b32 v4, 6, v0')
    k.e('v_lshl_add_u32 v5, v4, 3, v3')
    k.e('s_lshr_b32 s10, s2, 1\ns_lshl_b32 s10, s10, 15\ns_and_b32 s11, s2, 1\ns_lshl_b32 s11, s11, 7\ns_add_u32 s10, s10, s11')
    k.e('v_lshlrev_b32 v6, 10, v5\nv_lshl_add_u32 v6, v2, 8, v6\nv_lshl_add_u32 v6, v1, 4, v6\nv_add_u32 v6, s10, v6')
    if which == 1:
        k.e('s_lshl_b32 s11, s2, 14')
        k.e('v_lshlrev_b32 v7, 11, v1\nv_lshl_add_u32 v7, v5, 6, v7\nv_lshl_add_u32 v7, v2, 3, v7\nv_add_u32 v7, s11, v7')
    k.e('v_lshlrev_b32 v8, 7, v5\nv_lshl_add_u32 v8, v2, 4, v8')
    k.e('s_waitcnt lgkmcnt(0)')
    srd(k, 12, 8, 9, MODSZ, WS_MOD)
    if which == 1:
        srd(k, 16, 4, 5, SZ_ACTV)
        srd(k, 20, 8, 9, SZ_ACTV, WS_H1)
    else:
        srd(k, 16, 8, 9, SZ_ACTV, WS_X1)
        srd(k, 20, 8, 9, SZ_ACTV, WS_H2)
    for i in range(4):
        if which == 1:
            for t in range(2):
                k.e(f'buffer_load_dwordx2 v[{X+4*i+2*t}:{X+4*i+2*t+1}], v7, s[16:19], 0 offen offset:{i*128 + t*32}')
        else:
            k.e(f's_mov_b32 s24, {i*2048}')
            k.e(f'buffer_load_dwordx4 v[{X+4*i}:{X+4*i+3}], v6, s[16:19], s24 offen')
    if which == 1:
        srd(k, 52, 8, 9, SZ_FLAG, WS_FLAG)
        k.e('v_mov_b32 v132, 0\nv_mov_b32 v133, 0\nv_lshlrev_b32 v9, 3, v0\ns_lshl_b32 s24, s2, 9')
        k.e('v_cmp_gt_u32 vcc, 64, v0\ns_and_saveexec_b64 s[30:31], vcc')
        k.e(f's_cbranch_execz L_{name}_noclr')
        k.e('buffer_store_dwordx2 v[132:133], v9, s[52:55], s24 offen')
        k.label(f'L_{name}_noclr')
        k.e('s_mov_b64 exec, s[30:31]')
    R = 128
    if which == 2:
        stage_mod(k, 3, 4, 2, 12, 0, R, '')
    if which == 1:
        gemv(True)
    k.e('s_waitcnt vmcnt(2)' if which == 1 else 's_waitcnt vmcnt(4)')
    if which == 1: k.e(f's_cmp_lt_u32 s2, 128\ns_cbranch_scc1 L_{name}_xok\ns_waitcnt vmcnt(0)'); k.label(f'L_{name}_xok')
    k.stamp(1)
    for i in range(16):
        k.e(f'v_lshlrev_b32 v{F+2*i}, 16, v{X+i}')
        k.e(f'v_and_b32 v{F+2*i+1}, 0xffff0000, v{X+i}')
    k.e(f'v_add_f32 v10, v{F}, v{F+1}\nv_add_f32 v11, v{F+2}, v{F+3}')
    for i in range(2, 16):
        k.e(f'v_add_f32 v{10 + (i & 1)}, v{10 + (i & 1)}, v{F+2*i}')
        k.e(f'v_add_f32 v{10 + (i & 1)}, v{10 + (i & 1)}, v{F+2*i+1}')
    k.e('v_add_f32 v10, v10, v11')
    def wg_reduce(ldsoff):
        xor8_sum(k, 10); xor16_sum(k, 10, 11); xor32_sum(k, 10, 11)
        k.e('v_lshlrev_b32 v12, 5, v4\nv_lshl_add_u32 v12, v1, 2, v12')
        k.e(f'ds_write_b32 v12, v10 offset:{ldsoff}')
        k.e('s_waitcnt lgkmcnt(0)\ns_barrier')
        k.e('v_lshlrev_b32 v12, 2, v1')
        for w in range(4): k.e(f'ds_read_b32 v{13+w}, v12 offset:{ldsoff + w*32}')
        k.e('s_waitcnt lgkmcnt(0)')
        k.e('v_add_f32 v13, v13, v14\nv_add_f32 v15, v15, v16\nv_add_f32 v10, v13, v15')
    wg_reduce(3072)
    if which == 1:
        k.e('v_mov_b32 v18, v10')
        gemv(False)
        k.e('v_mov_b32 v10, v18')
    k.e(f'v_mul_f32 v10, {f32(1/1024)}, v10')
    for i in range(32): k.e(f'v_sub_f32 v{F+i}, v{F+i}, v10')
    k.e(f'v_mul_f32 v10, v{F}, v{F}\nv_mul_f32 v11, v{F+1}, v{F+1}')
    for i in range(2, 32): k.e(f'v_fmac_f32 v{10 + (i & 1)}, v{F+i}, v{F+i}')
    k.e('v_add_f32 v10, v10, v11')
    if which == 2:
        k.e('s_waitcnt vmcnt(0)')
        stage_mod_finish(k, False, 2, R, LSC, LSH)
    wg_reduce(3200)
    k.e(f'v_mul_f32 v10, {f32(1/1024)}, v10\nv_add_f32 v10, {f32(1e-5)}, v10\nv_rsq_f32 v10, v10\ns_nop 0')
    for i in range(32): k.e(f'v_mul_f32 v{F+i}, v{F+i}, v10')
    if which == 1:
        k.stamp(2)
        k.e('v_readfirstlane_b32 s48, v4')
        k.e(f's_cmp_lg_u32 s48, 0\ns_cbranch_scc1 L_{name}_polled')
        k.e('v_mov_b32 v9, 0\ns_mov_b32 s49, 0x400000')
        k.label(f'L_{name}_poll')
        k.e('global_load_dword v10, v9, s[36:37] sc1')
        k.e('s_waitcnt vmcnt(0)')
        k.e('v_readfirstlane_b32 s50, v10')
        k.e('s_sub_u32 s49, s49, 1')
        k.e(f's_cmp_eq_u32 s49, 0\ns_cbranch_scc1 L_{name}_polled')
        k.e(f's_cmp_lt_u32 s50, 128\ns_cbranch_scc1 L_{name}_poll')
        k.label(f'L_{name}_polled')
        k.e('s_barrier')
        k.stamp(3)
        stage_mod(k, 0, 1, 4, 12, 0, R, 'sc1')
        k.e('s_waitcnt vmcnt(0)')
        stage_mod_finish(k, True, 4, R, LSC, LSH)
        k.e('s_waitcnt lgkmcnt(0)\ns_barrier')
    for i in range(4):
        for t in range(2):
            k.e(f'ds_read_b128 v[{SC+8*i+4*t}:{SC+8*i+4*t+3}], v8 offset:{LSC + i*256 + t*64}')
            k.e(f'ds_read_b128 v[{SH+8*i+4*t}:{SH+8*i+4*t+3}], v8 offset:{LSH + i*256 + t*64}')
    for i in range(4):
        k.e(f's_waitcnt lgkmcnt({12 - 4*i})')
        for j in range(8):
            x = F + 8*i + j
            k.e(f'v_fma_f32 v{x}, v{x}, v{SC+8*i+j}, v{SH+8*i+j}')
        for u in range(4): k.e(f'v_cvt_pk_bf16_f32 v{X+4*i+u}, v{F+8*i+2*u}, v{F+8*i+2*u+1}')
        k.e(f's_mov_b32 s24, {i*2048}')
        k.e(f'buffer_store_dwordx4 v[{X+4*i}:{X+4*i+3}], v6, s[20:23], s24 offen')
    if which == 1 and opts.get('pfwq', True):
        srd(k, 40, 38, 39, 1024*4096*2)
        k.e('v_and_b32 v9, 63, v0\nv_lshlrev_b32 v9, 4, v9')
        k.e('s_lshl_b32 s30, s2, 2\ns_add_u32 s30, s30, s48\ns_lshl_b32 s30, s30, 13')
        for i in range(8):
            if i == 4: k.e('s_add_u32 s30, s30, 4096')
            k.e(f'buffer_load_dwordx4 v[{64+4*i}:{67+4*i}], v9, s[40:43], s30 offen offset:{(i%4)*1024}')
    if Kern.stamps:
        k.stamp(4 if which == 1 else 2); k.e('s_waitcnt vmcnt(0)'); k.stamp(5 if which == 1 else 3); k.e('v_lshrrev_b32 v9, 6, v0\ns_nop 1\nv_readfirstlane_b32 s64, v9\ns_nop 3'); k.flush_stamps(64)
    k.label(f'L_{name}_end')
    k.e('s_endpgm')
    return k.finish(vgpr=176, agpr=0, sgpr=64)
```
